```python
import torch

def _softmax(x, axis=-1):
    return torch.softmax(x, dim=axis)
def _gelu(x):
    return torch.nn.functional.gelu(x, approximate="tanh")
def _silu(x):
    return torch.nn.functional.silu(x)
def _sigmoid(x):
    return torch.sigmoid(x)
def _layernorm(x, axis=-1, eps=1e-5):
    m = x.mean(dim=axis, keepdim=True)
    v = x.var(dim=axis, keepdim=True, unbiased=False)
    return (x - m) / torch.sqrt(v + eps)
def _scatter_add(tgt, idx, src, axis=0):
    return tgt.clone().index_add_(axis, idx, src)
def _segment_sum(src, seg, n):
    out = torch.zeros((n,) + src.shape[1:], dtype=src.dtype)
    return out.index_add_(0, seg, src)
def _pad(x, pw):
    flat = tuple(v for pair in reversed(pw) for v in pair)
    return torch.nn.functional.pad(x, flat)

kernel_name = 'interleave_layers__sliding_local_dilated__ssm_conv_s4d__prompt'

def setup_inputs():

    _w = (lambda a: (lambda t: t.to(torch.bfloat16) if t.is_floating_point() else t)(torch.as_tensor(a)))
    def _A_setup():
        B, S, D = 1, 2048, 640
        return {
            "x": _w((lambda *s: torch.randn(*s, dtype=torch.bfloat16) * 0.05)(B, S, D)),
            "wqkv": _w((lambda *s: torch.randn(*s, dtype=torch.bfloat16) * 0.05)(D, 3 * D)),
            "wo": _w((lambda *s: torch.randn(*s, dtype=torch.bfloat16) * 0.05)(D, D)),
        }
    _A_in = _A_setup()

    def _B_setup():
        Bsz, L, D, N = 1, 2048, 640, 192
        return {
            "u": _w((lambda *s: torch.randn(*s, dtype=torch.bfloat16) * 0.05)(Bsz, L, D)),
            "log_A_real": _w((lambda *s: torch.randn(*s, dtype=torch.bfloat16) * 3.2)(D, N) * 0.5),
            "A_imag": _w((lambda *s: torch.randn(*s, dtype=torch.bfloat16) * 0.1)(D, N) * 3.14),
            "C_real": _w((lambda *s: torch.randn(*s, dtype=torch.bfloat16) * 0.4)(D, N) / N ** 0.5),
            "C_imag": _w((lambda *s: torch.randn(*s, dtype=torch.bfloat16) * 0.4)(D, N) / N ** 0.5),
            "log_dt": _w((lambda *s: torch.randn(*s, dtype=torch.bfloat16) * 0.1)(D) * 0.5 - 4.0),
            "D_skip": _w((lambda *s: torch.randn(*s, dtype=torch.bfloat16) * 0.1)(D)),
        }
    _B_in = _B_setup()

    return {
        "A_x": _A_in["x"],
        "A_wqkv": _A_in["wqkv"],
        "A_wo": _A_in["wo"],
        "B_u": _B_in["u"],
        "B_log_A_real": _B_in["log_A_real"],
        "B_A_imag": _B_in["A_imag"],
        "B_C_real": _B_in["C_real"],
        "B_C_imag": _B_in["C_imag"],
        "B_log_dt": _B_in["log_dt"],
        "B_D_skip": _B_in["D_skip"],
    }

def reference(A_x, A_wqkv, A_wo, B_u, B_log_A_real, B_A_imag, B_C_real, B_C_imag, B_log_dt, B_D_skip):
    def _A_ref(x, wqkv, wo):
        B, S, D = x.shape
        H = 32; Dh = D // H
        W, dil = 8, 2
        qkv = (lambda x, *d: x.permute(*d))((x @ wqkv).reshape(B, S, 3, H, Dh), 2, 0, 3, 1, 4)
        q, k, v = qkv[0], qkv[1], qkv[2]
        scale = Dh ** -0.5
        pos = torch.arange(S)
        off = torch.arange(W) * dil
        idx = pos[:, None] - off[None, :]
        mask = idx >= 0
        idx_c = torch.where(mask, idx, 0).reshape(-1)
        kg = k[:, :, idx_c, :].reshape(B, H, S, W, Dh)
        vg = v[:, :, idx_c, :].reshape(B, H, S, W, Dh)
        logits = torch.einsum("bhsd,bhswd->bhsw", q, kg) * scale
        logits = torch.where(mask[None, None, :, :], logits, -1e9)
        attn = _softmax(logits, axis=-1)
        o = torch.einsum("bhsw,bhswd->bhsd", attn, vg)
        return (lambda x, *d: x.permute(*d))(o, 0, 2, 1, 3).reshape(B, S, D) @ wo

    def _B_ref(u, log_A_real, A_imag, C_real, C_imag, log_dt, D_skip):
        L = u.shape[1]
        dt = torch.exp(log_dt)
        A = -torch.exp(log_A_real) + 1j * A_imag
        C = (C_real + 1j * C_imag) * dt[:, None]
        pos = (lambda x, dt: x.to(dt))(torch.arange(L), log_dt.dtype)
        P = torch.exp((A * dt[:, None])[:, :, None] * pos[None, None, :])
        K = 2.0 * torch.einsum("dn,dnl->dl", C, P).real
        L2 = 2 * L
        u_t = (lambda x, *d: x.permute(*d))(u, 0, 2, 1)
        Kf = (lambda x, *a, **k: torch.fft.rfft(x.float(), *a, **k))(K, L2)
        Uf = (lambda x, *a, **k: torch.fft.rfft(x.float(), *a, **k))(u_t, L2)
        y = (lambda x, *a, **k: torch.fft.irfft(x, *a, **k).to(torch.bfloat16))(Uf * Kf[None, :, :], L2)[:, :, :L]
        y = (lambda x, *d: x.permute(*d))(y, 0, 2, 1)
        return y + u * D_skip[None, None, :]

    x = A_x
    x = x + _A_ref(_layernorm(x, axis=-1), A_wqkv, A_wo)
    x = x + _B_ref(_layernorm(x, axis=-1), B_log_A_real, B_A_imag, B_C_real, B_C_imag, B_log_dt, B_D_skip)
    x = x + _A_ref(_layernorm(x, axis=-1), A_wqkv, A_wo)
    x = x + _B_ref(_layernorm(x, axis=-1), B_log_A_real, B_A_imag, B_C_real, B_C_imag, B_log_dt, B_D_skip)
    return x
```

```python
import re

TRANS = ("v_exp_f32", "v_log_f32", "v_rcp_f32", "v_rsq_f32", "v_sqrt_f32", "v_sin_f32", "v_cos_f32",
         "v_rcp_iflag_f32")

_reg_re = re.compile(r"^(-?)(?:abs\()?([vas])(?:(\d+)|\[(\d+):(\d+)\])\)?$")


def parse_reg(tok):
    tok = tok.strip()
    if tok in ("vcc",):
        return [("s", 106), ("s", 107)]
    if tok == "vcc_lo":
        return [("s", 106)]
    if tok == "vcc_hi":
        return [("s", 107)]
    if tok == "exec":
        return [("s", 126), ("s", 127)]
    if tok == "m0":
        return [("s", 124)]
    m = _reg_re.match(tok)
    if not m:
        return []
    k = m.group(2)
    if m.group(3) is not None:
        return [(k, int(m.group(3)))]
    return [(k, i) for i in range(int(m.group(4)), int(m.group(5)) + 1)]


def split_ops(s):
    out, depth, cur = [], 0, ""
    for ch in s:
        if ch == "[":
            depth += 1
        if ch == "]":
            depth -= 1
        if ch == "," and depth == 0:
            out.append(cur.strip())
            cur = ""
        else:
            cur += ch
    if cur.strip():
        out.append(cur.strip())
    return out


class Ins:
    __slots__ = ("text", "mn", "kind", "wr", "rd", "passes", "sgemm", "dpp", "wide_store", "srcc", "srcab",
                 "states", "sdata")

    def __init__(self, text):
        self.text = text
        t = text.split(";")[0].strip()
        parts = t.split(None, 1)
        self.mn = parts[0]
        rest = parts[1] if len(parts) > 1 else ""
        ops = split_ops(rest)
        mods = ""
        if ops:
            last = ops[-1].split(None, 1)
            ops[-1] = last[0]
            mods = last[1] if len(last) > 1 else ""
        mn = self.mn
        self.wr, self.rd = set(), set()
        self.passes, self.sgemm = 0, False
        self.dpp = ("quad_perm" in rest or "row_" in rest or "_dpp" in mn)
        self.wide_store = False
        self.srcc, self.srcab = set(), set()
        self.sdata = set()
        self.states = 1
        R = [parse_reg(o) for o in ops]
        if mn == "s_nop":
            self.kind = "nop"
            self.states = int(ops[0], 0) + 1
        elif mn.startswith("v_mfma"):
            self.kind = "mfma"
            self.wr = set(R[0])
            self.srcab = set(R[1]) | set(R[2])
            self.srcc = set(R[3])
            self.rd = self.srcab | self.srcc
            if "4x4x4" in mn:
                self.passes = 2
            elif "16x16x32" in mn:
                self.passes = 4
            elif "32x32x16" in mn:
                self.passes = 8
            elif "16x16x4_f32" in mn:
                self.passes, self.sgemm = 8, True
            elif "32x32x2_f32" in mn:
                self.passes, self.sgemm = 16, True
            else:
                raise ValueError(mn)
        elif mn.startswith("v_"):
            self.kind = "trans" if mn.replace("_e32", "").replace("_e64", "") in TRANS else "valu"
            if mn.startswith("v_cmp"):
                self.wr = set(R[0])
                for r in R[1:]:
                    self.rd |= set(r)
            elif mn.startswith("v_permlane") and "swap" in mn:
                self.wr = set(R[0]) | set(R[1])
                self.rd = set(R[0]) | set(R[1])
            elif mn.startswith(("v_add_co", "v_sub_co", "v_addc_co", "v_subb_co")):
                self.wr = set(R[0]) | set(R[1])
                for r in R[2:]:
                    self.rd |= set(r)
            else:
                self.wr = set(R[0])
                for r in R[1:]:
                    self.rd |= set(r)
                if mn.startswith(("v_fmac", "v_dot2c", "v_pk_fmac")) or self.dpp:
                    self.rd |= set(R[0])
                if mn.startswith("v_cndmask") and len(ops) == 3:
                    self.rd |= {("s", 106), ("s", 107)}
                if mn.startswith("v_writelane"):
                    self.rd |= set(R[0])
        elif mn.startswith(("global_", "buffer_", "flat_")):
            self.kind = "vmem"
            if "atomic" in mn and "sc0" in mods:
                self.wr = set(R[0])
                for r in R[1:]:
                    self.rd |= set(r)
            elif "store" in mn or "atomic" in mn:
                for r in R:
                    self.rd |= set(r)
                if mn.startswith("global_"):
                    self.sdata = set(R[1])
                else:
                    self.sdata = set(R[0])
                self.wide_store = ("dwordx3" in mn or "dwordx4" in mn)
            elif "lds" in mn or " lds" in mods:
                for r in R:
                    self.rd |= set(r)
                self.rd |= {("s", 124)}
            else:
                self.wr = set(R[0])
                for r in R[1:]:
                    self.rd |= set(r)
                if "d16" in mn:
                    self.rd |= set(R[0])
        elif mn.startswith("ds_"):
            self.kind = "ds"
            if mn.startswith(("ds_write", "ds_add", "ds_max", "ds_min", "ds_inc")) and "rtn" not in mn:
                for r in R:
                    self.rd |= set(r)
                if "addtid" in mn:
                    self.rd |= {("s", 124)}
            else:
                self.wr = set(R[0])
                for r in R[1:]:
                    self.rd |= set(r)
        elif mn.startswith("s_"):
            self.kind = "salu"
            if mn.startswith(("s_cmp", "s_cbranch", "s_branch", "s_waitcnt", "s_barrier", "s_endpgm", "s_setprio",
                              "s_sleep")):
                for r in R:
                    self.rd |= set(r)
            else:
                if R:
                    self.wr = set(R[0])
                for r in R[1:]:
                    self.rd |= set(r)
                if "saveexec" in mn:
                    self.wr |= {("s", 126), ("s", 127)}
        else:
            raise ValueError("unknown instruction: " + text)


def need_states(p, c):
    n = 0
    pv = {r for r in p.wr if r[0] in "va"}
    ps = {r for r in p.wr if r[0] == "s"}
    if p.mn.startswith("v_dot") and pv & (c.rd | c.wr):
        n = max(n, 3)
    if p.kind in ("valu", "trans") and ("dst_sel:WORD" in p.text or "dst_sel:BYTE" in p.text or "mix_lo" in p.mn or "mixlo" in p.mn or "mixhi" in p.mn):
        if c.kind in ("valu", "trans") and pv & (c.rd | c.wr):
            n = max(n, 1)
    if p.kind in ("valu", "trans") and (("s", 126) in p.wr):
        if c.kind == "mfma":
            n = max(n, 4)
        if c.dpp:
            n = max(n, 5)
    if p.kind in ("valu", "trans"):
        if c.kind == "mfma" and pv & c.rd:
            n = max(n, 2)
        if p.kind == "trans" and c.kind in ("valu",) and pv & c.rd:
            n = max(n, 1)
        if p.kind == "trans" and c.kind in ("vmem", "ds") and pv & c.rd:
            n = max(n, 1)
        if c.mn.startswith(("v_readfirstlane", "v_readlane")) and pv & c.rd:
            n = max(n, 1)
        if c.kind in ("valu", "trans") and c.dpp and pv & c.rd:
            n = max(n, 2)
        if c.mn.startswith("v_permlane") and pv & c.rd:
            n = max(n, 2)
        if ps:
            if c.kind in ("valu", "trans", "mfma") and ps & c.rd:
                n = max(n, 4 if c.mn.startswith(("v_readlane", "v_writelane")) else 2)
            if c.kind == "vmem" and ps & c.rd:
                n = max(n, 5)
            if c.kind == "salu" and ps & c.rd:
                n = max(n, 2)
    if p.kind == "mfma":
        tab_rw = {2: 5, 4: 8, 8: 12, 16: 20} if not p.sgemm else {4: 6, 8: 10, 16: 18}
        if c.kind in ("valu", "trans", "vmem", "ds") and (p.wr & (c.rd | c.wr)):
            n = max(n, tab_rw[p.passes])
        if c.kind == "mfma":
            if p.wr & c.srcab:
                n = max(n, tab_rw[p.passes])
            if p.wr & c.srcc and not (p.wr == c.srcc and p.passes == c.passes):
                n = max(n, {2: 4, 4: 6, 8: 10, 16: 18}[p.passes])
            if p.wr & c.srcc and p.passes == 2:
                n = max(n, 2)
            if p.wr & c.wr and not (p.wr & c.srcc):
                n = max(n, tab_rw[p.passes])
        if c.kind in ("valu", "trans") and (p.srcc & c.wr):
            n = max(n, {2: 1, 4: 3, 8: 7, 16: 15}[p.passes])
    if p.kind == "vmem" and p.wide_store and (p.sdata & c.wr):
        n = max(n, 2)
    if p.kind == "salu" and ("s", 124) in p.wr and ("s", 124) in c.rd:
        n = max(n, 1)
    return n


def worst_states(p):
    n = 0
    if p.kind in ("valu", "trans"):
        if any(r[0] in "va" for r in p.wr):
            n = 3 if p.mn.startswith("v_dot") else 2
        if any(r[0] == "s" for r in p.wr):
            n = 5
    if p.kind == "mfma":
        n = ({2: 5, 4: 8, 8: 12, 16: 20} if not p.sgemm else {4: 6, 8: 10, 16: 18})[p.passes]
    if p.kind == "vmem" and p.wide_store:
        n = 2
    if p.kind == "salu" and ("s", 124) in p.wr:
        n = 1
    return n


class Asm:
    def __init__(self):
        self.lines = []

    def __call__(self, s):
        for ln in s.strip("\n").split("\n"):
            ln = ln.strip()
            if ln:
                self.lines.append(ln)

    def label(self, name):
        self.lines.append(name + ":")

    def raw(self, s):
        self.lines.append("\0" + s)

    def finish(self):
        out = []
        hist = []
        for ln in self.lines:
            if ln.startswith("\0"):
                out.append(ln[1:])
                continue
            if ln.startswith(";"):
                out.append("    " + ln)
                continue
            if ln.endswith(":") or ln.startswith("."):
                out.append(ln)
                if ln.endswith(":"):
                    pass
                continue
            ins = Ins(ln)
            need = 0
            dist = 0
            isbr = ins.mn.startswith(("s_branch", "s_cbranch", "s_setpc", "s_swappc"))
            for p in reversed(hist):
                k = need_states(p, ins)
                if isbr:
                    k = max(k, worst_states(p) - 1)
                if k > dist:
                    need = max(need, k - dist)
                dist += p.states
                if dist > 24:
                    break
            while need > 0:
                k = min(need, 16)
                nop = Ins("s_nop %d" % (k - 1))
                out.append("    s_nop %d" % (k - 1))
                hist.append(nop)
                need -= k
            out.append("    " + ln)
            hist.append(ins)
            if len(hist) > 40:
                hist = hist[-40:]
        return "\n".join(out) + "\n"


def vr(i, n=1):
    return "v%d" % i if n == 1 else "v[%d:%d]" % (i, i + n - 1)


def ar(i, n=1):
    return "a%d" % i if n == 1 else "a[%d:%d]" % (i, i + n - 1)


def sr(i, n=1):
    return "s%d" % i if n == 1 else "s[%d:%d]" % (i, i + n - 1)
```

```python
from mcommon import *

XA, XT, RSA, ONES, RES = 2, 6, 7, 10, 10
FR, NFR, ACC = 16, 8, 48
WA = 44

ROLES = {"A": dict(b=(0, 1), q=(0, 1), st=(1,)), "B": dict(b=(0, 1), q=(0, 1), st=(2,)),
         "C": dict(b=(0, 1), q=(), st=()), "D": dict(b=(0, 1), q=(0,), st=(0,)),
         "E": dict(b=(0,), q=(), st=(3, 4))}
WROLE = "ABCDCCCE"


def role_ops(role, L1):
    r = ROLES[role]
    ops, acc = {}, {}
    for mt in range(5):
        l = [("w", b) for b in r["b"] if not (mt == 0 and b in r["q"] and not L1)]
        if mt in r["st"]:
            l += [("S", 0), ("U", 0)]
        if l:
            ops[mt] = l
    for mt in ops:
        for op in ops[mt]:
            acc[(mt, op)] = ACC + 4 * len(acc)
    assert len(acc) <= 12
    return list(ops), ops, acc


def a1_addresses(a, L1):
    a(f"""
    v_and_b32 v16, 15, v1
    v_lshrrev_b32 v17, 4, v1
    v_lshrrev_b32 v18, 2, v16
    v_and_b32 v19, 3, v1
    s_and_b32 s{T0}, s{S_WAVE}, 3
    s_lshr_b32 s{T0 + 1}, s{S_WAVE}, 2
    s_mul_i32 s{T0 + 1}, s{T0 + 1}, 48
    s_mul_i32 s{T0 + 2}, s{S_HG}, 80
    s_add_u32 s{T0 + 1}, s{T0 + 1}, s{T0 + 2}
    """)
    for r in range(4):
        a(f"v_mov_b32 v{ONES + r}, 0x3f803f80")
    if L1:
        a(f"""
        s_mul_i32 s{T0 + 4}, s{S_HG}, 15
        s_lshl_b32 s{T0 + 5}, s{S_WAVE}, 1
        s_add_u32 s{T0 + 4}, s{T0 + 4}, s{T0 + 5}
        s_mul_i32 s{T0 + 4}, s{T0 + 4}, 20480
        s_add_u32 s{T0 + 4}, s{T0 + 4}, {WP}
        """)
        add64(a, T0 + 6, P_WS, f"s{T0 + 4}")
        add64(a, T0 + 8, T0 + 6, 20480)
        for j in range(4):
            a(f"""
            s_xor_b32 s{T0 + 4}, s{S_SK}, {j}
            s_lshl_b32 s{T0 + 4}, s{T0 + 4}, 10
            v_lshl_add_u32 v{WA + j}, v1, 4, s{T0 + 4}
            """)
        a(f"v_mul_u32_u24 v20, 1280, v16")
        a(f"v_add_u32 v20, {R_X}, v20")
        for j in range(4):
            a(f"""
            v_add_u32 v21, {4 * j}, v17
            v_xor_b32 v21, v21, v16
            v_lshl_add_u32 v{XA + j}, v21, 4, v20
            """)
        a(f"""
        v_lshl_add_u32 v20, v17, 2, v18
        s_lshl_b32 s{T0 + 2}, s{S_SK}, 2
        v_xor_b32 v21, s{T0 + 2}, v20
        s_lshl_b32 s{T0 + 2}, s{T0}, 4
        s_add_u32 s{T0 + 2}, s{T0 + 2}, 16
        v_add_u32 v20, s{T0 + 2}, v20
        v_mul_u32_u24 v20, 1280, v20
        v_add_u32 v20, {R_X}, v20
        v_and_b32 v22, 1, v19
        v_lshl_add_u32 v20, v22, 3, v20
        v_lshrrev_b32 v22, 1, v19
        s_lshr_b32 s{T0 + 2}, s{T0 + 1}, 3
        v_add_u32 v22, s{T0 + 2}, v22
        """)
        for i in range(3):
            a(f"""
            v_add_u32 v23, {2 * i}, v22
            v_min_u32 v23, 79, v23
            v_xor_b32 v23, v23, v21
            v_lshl_add_u32 v{RSA + i}, v23, 4, v20
            """)
    else:
        a(f"""
        v_lshl_add_u32 v20, v17, 2, v18
        v_mul_u32_u24 v20, 160, v20
        v_add_u32 v20, {R_X}, v20
        v_lshl_add_u32 v{XA}, v19, 3, v20
        v_add_u32 v{XA + 1}, {12 * 5120}, v{XA}
        s_lshl_b32 s{T0 + 2}, s{T0}, 5
        s_add_u32 s{T0 + 2}, s{T0 + 2}, {R_X + 32}
        v_lshl_add_u32 v20, v17, 3, s{T0 + 2}
        s_lshl_b32 s{T0 + 2}, s{S_SK}, 5
        """)
        for i in range(3):
            a(f"""
            v_add_u32 v21, {16 * i}, v16
            v_add_u32 v21, s{T0 + 1}, v21
            v_min_u32 v21, 639, v21
            v_xor_b32 v21, s{T0 + 2}, v21
            v_and_b32 v22, 0x3e3, v21
            v_bfe_u32 v23, v21, 3, 2
            v_lshl_or_b32 v22, v23, 2, v22
            v_and_b32 v22, 0x3ef, v22
            v_bfe_u32 v23, v21, 2, 1
            v_lshl_or_b32 v22, v23, 4, v22
            v_mul_u32_u24 v22, 160, v22
            v_add_u32 v{RSA + i}, v22, v20
            """)


DMA_STEPS = [(2, 3), (5, 8), (9, 14), (13, 20)]


def gemm(a, role, L1):
    mts, ops, acc = role_ops(role, L1)
    nB = len(ROLES[role]["b"])
    seq = [(q, mt) for q in range(20) for mt in mts]
    RD = 1 if L1 else 2
    NFR = 7 if L1 else 8
    AHEAD = NFR - 1
    landed = [0]
    steps = list(DMA_STEPS)

    def issue(i):
        q, mt = seq[i]
        f = FR + 4 * (i % NFR)
        if L1:
            if mt == 4:
                a(f"v_add_u32 v{XT}, 81920, v{XA + q % 4}")
                a(f"ds_read_b128 {vq(f)}, v{XT} offset:{(q >> 2) * 256}")
            else:
                a(f"ds_read_b128 {vq(f)}, v{XA + q % 4} offset:{mt * 20480 + (q >> 2) * 256}")
        else:
            while q >= landed[0]:
                n, sl = steps.pop(0)
                if n >= 13:
                    a("s_waitcnt vmcnt(0)")
                else:
                    a(f"s_waitcnt vmcnt({12 - n})")
                a("s_barrier")
                landed[0] = sl
            b, o = (XA, q * 5120) if q < 12 else (XA + 1, (q - 12) * 5120)
            a(f"ds_read_b64_tr_b16 v[{f}:{f + 1}], v{b} offset:{o + 32 * mt}")
            a(f"ds_read_b64_tr_b16 v[{f + 2}:{f + 3}], v{b} offset:{o + 32 * mt + 2560}")

    WAH = 8
    WPRE = int(os.environ.get('WPRE', '4'))

    def wload(q):
        for b in ROLES[role]["b"]:
            a(f"global_load_dwordx4 {vq(WREG + 80 * b + 4 * q)}, v{WA + q % 4}, {sp(T0 + 6 + 2 * b)} sc1")
        if q % 4 == 3 and q < 19:
            for b in ROLES[role]["b"]:
                add64(a, T0 + 6 + 2 * b, T0 + 6 + 2 * b, 4096)

    if L1:
        for q in range(WPRE):
            wload(q)
        a("s_waitcnt lgkmcnt(0)")
        a("s_barrier")
        stamp(a, 4)
        for q in range(WPRE, WAH):
            wload(q)
    for i in range(AHEAD):
        issue(i)
    for i, (q, mt) in enumerate(seq):
        if L1 and mt == mts[0] and q + WAH < 20:
            wload(q + WAH)
        if i + AHEAD < len(seq):
            issue(i + AHEAD)
        later = min(AHEAD, len(seq) - 1 - i)
        w = f"lgkmcnt({RD * later})"
        if L1 and mt == mts[0]:
            w = f"vmcnt({nB * (min(q + WAH, 19) - q)}) " + w
        a(f"s_waitcnt {w}")
        f = vq(FR + 4 * (i % NFR))
        for op in ops[mt]:
            c = vq(acc[(mt, op)])
            A = vq(WREG + 80 * op[1] + 4 * q) if op[0] == "w" else f if op[0] == "S" else vq(ONES)
            a(f"v_mfma_f32_16x16x32_bf16 {c}, {A}, {f}, {c if q else 0}")
    for i in range(3):
        if L1:
            a(f"ds_read_b64_tr_b16 v[{RES + 2 * i}:{RES + 2 * i + 1}], v{RSA + i}")
        else:
            a(f"ds_read_b64 v[{RES + 2 * i}:{RES + 2 * i + 1}], v{RSA + i}")
    a(f"""
    v_and_b32 v16, 15, v1
    v_lshrrev_b32 v17, 4, v1
    """)
    st = ROLES[role]["st"]
    if st:
        a(f"""
        v_and_b32 v18, 3, v1
        v_lshrrev_b32 v19, 2, v16
        v_cmp_eq_u32 {sp(T0)}, 1, v18
        v_cmp_eq_u32 {sp(T0 + 2)}, 2, v18
        v_cmp_eq_u32 {sp(T0 + 4)}, 3, v18
        v_cmp_eq_u32 {sp(T0 + 6)}, v19, v17
        v_lshlrev_b32 v18, 3, v16
        v_add_u32 v18, {L_ST}, v18
        """)
        P = [(acc[(mt, ("U", 0))], acc[(mt, ("S", 0))]) for mt in st]
        for c in range(3):
            for su, sq in P:
                a(f"v_cndmask_b32 v{sq}, v{sq}, v{sq + 1 + c}, {sp(T0 + 2 * c)}")
        for su, sq in P:
            a(f"v_mul_f32 v{su}, 0x3acccccd, v{su}")
            a(f"v_mul_f32 v{sq}, 0x3acccccd, v{sq}")
        for su, sq in P:
            a(f"v_fma_f32 v{sq}, -v{su}, v{su}, v{sq}")
        for su, sq in P:
            a(f"v_max_f32 v{sq}, 0, v{sq}")
        for su, sq in P:
            a(f"v_cvt_pk_bf16_f32 v{su}, v{su}, v{sq}")
        for su, sq in P:
            a(f"v_and_b32 v{sq}, 0xffff0000, v{su}")
            a(f"v_lshlrev_b32 v{su}, 16, v{su}")
        for su, sq in P:
            a(f"v_add_f32 v{sq}, 0x3727c5ac, v{sq}")
        for su, sq in P:
            a(f"v_cvt_pk_bf16_f32 v{sq}, v{sq}, v{sq}")
        for su, sq in P:
            a(f"v_lshlrev_b32 v{sq}, 16, v{sq}")
        for su, sq in P:
            a(f"v_sqrt_f32 v{sq}, v{sq}")
        for su, sq in P:
            a(f"v_cvt_pk_bf16_f32 v{sq}, v{sq}, v{sq}")
        for su, sq in P:
            a(f"v_lshlrev_b32 v{sq}, 16, v{sq}")
        for su, sq in P:
            a(f"v_rcp_f32 v{su + 1}, v{sq}")
        a(f"s_mov_b64 exec, {sp(T0 + 6)}")
        for mt, (su, sq) in zip(st, P):
            a(f"ds_write_b64 v18, v[{su}:{su + 1}] offset:{128 * mt}")
        a("s_mov_b64 exec, -1")
    a(f"""
    s_lshl_b32 s{T0}, s{S_WAVE}, 7
    s_add_u32 s{T0}, s{T0}, {L_CS}
    v_lshl_add_u32 v19, v17, 4, s{T0}
    """)
    if L1:
        a("s_mov_b64 exec, 0x10001")
        a("s_mov_b32 exec_hi, 0x10001")
        for b in ROLES[role]["b"]:
            a(f"ds_write_b128 v19, {vq(acc[(0, ('w', b))])} offset:{64 * b}")
        a("s_mov_b64 exec, -1")
    eo = role in "ABC"
    a(f"""
    s_lshl_b32 s{T0}, s{S_WAVE}, 6
    s_cmp_eq_u32 s{S_WAVE}, 2
    s_cselect_b32 s{T0}, 192, s{T0}
    s_cmp_eq_u32 s{S_WAVE}, 3
    s_cselect_b32 s{T0}, 128, s{T0}
    s_add_u32 s{T0}, s{T0}, {R_X}
    v_mul_u32_u24 v20, {QS}, v16
    v_lshl_add_u32 v20, v17, {4 if eo else 3}, v20
    v_add_u32 v20, s{T0}, v20
    v_lshlrev_b32 v18, 3, v16
    v_add_u32 v18, {L_ST}, v18
    s_waitcnt lgkmcnt(0)
    s_barrier
    """)
    stamp_l(a, 6, 14)
    emts = [mt for mt in mts if any(op[0] == "w" and not (mt == 0 and op[1] in ROLES[role]["q"]) for op in ops[mt])]
    MS, CSR = 24, 36
    for mt in emts:
        a(f"ds_read_b64 v[{MS + 2 * mt}:{MS + 2 * mt + 1}], v18 offset:{128 * mt}")
    for b in ROLES[role]["b"]:
        a(f"ds_read_b128 {vq(CSR + 4 * b)}, v19 offset:{64 * b}")
    a("s_waitcnt lgkmcnt(0)")
    tl = [(mt, b) for mt in emts for b in ROLES[role]["b"] if not (mt == 0 and b in ROLES[role]["q"])]
    for mt, b in tl:
        c = acc[(mt, ("w", b))]
        for r in range(4):
            a(f"v_fma_f32 v{c + r}, -v{MS + 2 * mt}, v{CSR + 4 * b + r}, v{c + r}")
    for mt, b in tl:
        c = acc[(mt, ("w", b))]
        for r in range(4):
            a(f"v_mul_f32 v{c + r}, v{c + r}, v{MS + 2 * mt + 1}")
    if eo:
        for mt in emts:
            e, o = acc[(mt, ("w", 0))], acc[(mt, ("w", 1))]
            for r in range(4):
                a(f"v_cvt_pk_bf16_f32 v{e + r}, v{e + r}, v{o + r}")
            a(f"ds_write_b128 v20, {vq(e)} offset:{16 * mt * QS}")
    else:
        for mt, b in tl:
            c = acc[(mt, ("w", b))]
            a(f"v_cvt_pk_bf16_f32 v{c}, v{c}, v{c + 1}")
            a(f"v_cvt_pk_bf16_f32 v{c + 1}, v{c + 2}, v{c + 3}")
            a(f"ds_write_b64 v20, v[{c}:{c + 1}] offset:{16 * mt * QS + 32 * b}")


def gemm_all(a, L1):
    tag = "g1" if L1 else "g2"
    a(f"""
    s_cmp_eq_u32 s{S_WAVE}, 0
    s_cbranch_scc1 L_{tag}A
    s_cmp_eq_u32 s{S_WAVE}, 1
    s_cbranch_scc1 L_{tag}B
    s_cmp_eq_u32 s{S_WAVE}, 3
    s_cbranch_scc1 L_{tag}D
    s_cmp_eq_u32 s{S_WAVE}, 7
    s_cbranch_scc1 L_{tag}E
    """)
    for role in "CABDE":
        if role != "C":
            a.label(f"L_{tag}{role}")
        gemm(a, role, L1)
        a("s_branch L_a1_post")


def attention(a):
    Q, K, S, O, P = 16, 26, 56, 68, 88
    a(f"""
    v_bfe_u32 v2, v1, 4, 1
    v_lshrrev_b32 v3, 5, v1
    v_bfe_u32 v4, v1, 2, 2
    v_and_b32 v5, 3, v1
    v_lshl_add_u32 v6, v3, 2, v4
    v_lshl_add_u32 v7, v6, 2, v5
    v_lshl_add_u32 v7, v7, 1, v2
    s_mul_i32 s{T0}, s{S_WAVE}, 40
    s_add_u32 s{T0}, s{T0}, {R_X}
    v_mul_u32_u24 v8, {QS}, v7
    v_add_u32 v8, s{T0}, v8
    v_lshl_add_u32 v9, v3, 2, v5
    v_lshl_add_u32 v9, v9, 2, v4
    v_lshl_add_u32 v9, v9, 1, v2
    v_mul_u32_u24 v9, {QS}, v9
    v_add_u32 v9, s{T0}, v9
    """)
    for j in range(5):
        a(f"ds_read_b64 v[{Q + 2 * j}:{Q + 2 * j + 1}], v8 offset:{16 * QS + 8 * j}")
    for d in (1, 0):
        for j in range(5):
            a(f"ds_read_b64 v[{K + 10 * d + 2 * j}:{K + 10 * d + 2 * j + 1}], v8 offset:{(16 - 8 * d) * QS + 160 + 8 * j}")
    a("s_waitcnt lgkmcnt(10)")
    for j in range(5):
        a(f"ds_read_b64 v[{K + 20 + 2 * j}:{K + 20 + 2 * j + 1}], v8 offset:{160 + 8 * j}")
    a(f"""
    s_mul_i32 s{T0}, s{S_HG}, 10
    s_mul_i32 s{T0 + 1}, s{S_WAVE}, 5
    s_lshr_b32 s{T0 + 1}, s{T0 + 1}, 1
    s_add_u32 s{T0}, s{T0}, s{T0 + 1}
    s_lshl_b32 s{T0}, s{T0}, 8
    s_mul_i32 s{T0 + 1}, s{S_RB}, {4 * 20480}
    s_add_u32 s{T0}, s{T0}, s{T0 + 1}
    s_add_u32 s{T0}, s{T0}, s{S_BOFF}
    s_add_u32 s{T0}, s{T0}, {OB}
    v_lshrrev_b32 v2, 4, v7
    v_mul_u32_u24 v2, 20480, v2
    v_and_b32 v3, 15, v7
    v_lshl_add_u32 v2, v3, 4, v2
    v_add_u32 v2, s{T0}, v2
    v_cmp_le_u32 {sp(T0 + 2)}, 1, v5
    v_cmp_le_u32 {sp(T0 + 4)}, 2, v5
    v_cmp_le_u32 {sp(T0 + 6)}, 3, v5
    v_mov_b32 v3, 0xffff
    v_cndmask_b32 v4, 0, v3, {sp(T0 + 4)}
    v_cndmask_b32 v3, v3, -1, {sp(T0 + 2)}
    v_cndmask_b32 v4, v4, -1, {sp(T0 + 6)}
    s_waitcnt lgkmcnt(5)
    """)
    for j in range(5):
        for d in (1, 0):
            c = vq(S + 4 * d)
            a(f"v_mfma_f32_4x4x4_16b_bf16 {c}, v[{K + 10 * d + 2 * j}:{K + 10 * d + 2 * j + 1}], v[{Q + 2 * j}:{Q + 2 * j + 1}], {c if j else 0}")
    a("s_waitcnt lgkmcnt(0)")
    for j in range(5):
        c = vq(S + 8)
        a(f"v_mfma_f32_4x4x4_16b_bf16 {c}, v[{K + 20 + 2 * j}:{K + 20 + 2 * j + 1}], v[{Q + 2 * j}:{Q + 2 * j + 1}], {c if j else 0}")
    for d in range(3):
        for j in range(5):
            a(f"ds_read_b64_tr_b16 v[{K + 10 * d + 2 * j}:{K + 10 * d + 2 * j + 1}], v9 offset:{(16 - 8 * d) * QS + 320 + 8 * j}")
    a(f"""
    s_cmp_lg_u32 s{S_RB}, 0
    s_cbranch_scc1 L_at_nomask
    v_mov_b32 v{P}, 0xce6e6b28
    v_cmp_eq_u32 vcc, 0, v6
    v_cmp_ge_u32 {sp(T0 + 8)}, 1, v6
    """)
    for r in range(4):
        a(f"v_cndmask_b32 v{S + 4 + r}, v{S + 4 + r}, v{P}, vcc")
    for r in range(1, 4):
        a(f"v_cndmask_b32 v{S + 8 + r}, v{S + 8 + r}, v{P}, {sp(T0 + 8)}")
    a.label("L_at_nomask")
    for r in range(1, 4):
        a(f"v_cndmask_b32 v{S + r}, v{S + 8 + r}, v{S + r}, {sp(T0 + 2 * r)}")

    def round8():
        for w in range(4):
            a(f"v_cvt_pk_bf16_f32 v{P + w}, v{S + 2 * w}, v{S + 2 * w + 1}")
        for w in range(4):
            a(f"v_lshlrev_b32 v{S + 2 * w}, 16, v{P + w}")
            a(f"v_and_b32 v{S + 2 * w + 1}, 0xffff0000, v{P + w}")

    round8()
    a(f"s_mov_b32 s{T0 + 8}, {SCALE}")
    a(f"s_mov_b32 s{T0 + 9}, {SCALE}")
    for w in range(4):
        a(f"v_pk_mul_f32 v[{S + 2 * w}:{S + 2 * w + 1}], v[{S + 2 * w}:{S + 2 * w + 1}], {sp(T0 + 8)}")
    round8()
    a(f"""
    v_max3_f32 v{P}, v{S}, v{S + 1}, v{S + 2}
    v_max3_f32 v{P + 1}, v{S + 3}, v{S + 4}, v{S + 5}
    v_max3_f32 v{P}, v{P}, v{S + 6}, v{S + 7}
    v_max_f32 v{P}, v{P}, v{P + 1}
    s_mov_b32 s{T0 + 8}, {LOG2E}
    s_mov_b32 s{T0 + 9}, {LOG2E}
    v_mov_b32 v{P + 1}, v{P}
    """)
    for w in range(4):
        a(f"v_pk_add_f32 v[{S + 2 * w}:{S + 2 * w + 1}], v[{S + 2 * w}:{S + 2 * w + 1}], v[{P}:{P + 1}] neg_lo:[0,1] neg_hi:[0,1]")
    for w in range(4):
        a(f"v_pk_mul_f32 v[{S + 2 * w}:{S + 2 * w + 1}], v[{S + 2 * w}:{S + 2 * w + 1}], {sp(T0 + 8)}")
    for w in range(8):
        a(f"v_exp_f32 v{S + w}, v{S + w}")
    a(f"""
    v_add_f32 v{P}, v{S}, v{S + 1}
    v_add_f32 v{P + 1}, v{S + 2}, v{S + 3}
    v_add_f32 v{P + 2}, v{S + 4}, v{S + 5}
    v_add_f32 v{P + 3}, v{S + 6}, v{S + 7}
    v_add_f32 v{P}, v{P}, v{P + 1}
    v_add_f32 v{P + 2}, v{P + 2}, v{P + 3}
    v_add_f32 v{P}, v{P}, v{P + 2}
    v_rcp_f32 v{P}, v{P}
    """)
    for w in range(8):
        a(f"v_mul_f32 v{S + w}, v{S + w}, v{P}")
    a(f"""
    v_cvt_pk_bf16_f32 v{P + 4}, v{S}, v{S + 1}
    v_cvt_pk_bf16_f32 v{P + 5}, v{S + 2}, v{S + 3}
    v_cvt_pk_bf16_f32 v{P + 2}, v{S + 4}, v{S + 5}
    v_cvt_pk_bf16_f32 v{P + 3}, v{S + 6}, v{S + 7}
    v_and_b32 v{P}, v3, v{P + 4}
    v_and_b32 v{P + 1}, v4, v{P + 5}
    v_xor_b32 v{P + 4}, v{P}, v{P + 4}
    v_xor_b32 v{P + 5}, v{P + 1}, v{P + 5}
    s_waitcnt lgkmcnt(0)
    s_barrier
    """)
    for d in (1, 0, 2):
        for j in range(5):
            c = vq(O + 4 * j)
            a(f"v_mfma_f32_4x4x4_16b_bf16 {c}, v[{K + 10 * d + 2 * j}:{K + 10 * d + 2 * j + 1}], v[{P + 2 * d}:{P + 2 * d + 1}], {0 if d == 1 else c}")
    for i in range(10):
        a(f"v_cvt_pk_bf16_f32 v{Q + i}, v{O + 2 * i}, v{O + 2 * i + 1}")
    a(f"""
    s_bitcmp1_b32 s{S_WAVE}, 0
    s_cbranch_scc1 L_at_odd
    global_store_dwordx4 v2, {vq(Q)}, {sp(P_WS)} sc1
    global_store_dwordx4 v2, {vq(Q + 4)}, {sp(P_WS)} offset:256 sc1
    global_store_dwordx2 v2, v[{Q + 8}:{Q + 9}], {sp(P_WS)} offset:512 sc1
    s_branch L_at_st
    """)
    a.label("L_at_odd")
    a(f"""
    global_store_dwordx2 v2, v[{Q}:{Q + 1}], {sp(P_WS)} offset:8 sc1
    global_store_dwordx4 v2, {vq(Q + 2)}, {sp(P_WS)} offset:256 sc1
    global_store_dwordx4 v2, {vq(Q + 6)}, {sp(P_WS)} offset:512 sc1
    """)
    a.label("L_at_st")
```

```python
from mcommon import *
import g_a1, g_start
import model_conv as mc
import model_ssm as ms
import numpy as np

RES = g_a1.RES
UB = g_start.UB
SEC = dict(near=(0, 600), g9=(600, 104), g7=(704, 104), g5=(808, 136), g3=(944, 136))
NLIN = 1080
LINB = 2304
LIN = R_X


def lin_sources():
    out = []
    near = lambda l: mc.bf16r(l) if 0 <= l <= 514 else 1024 if l in (547, 548) else -1
    g = {"g9": lambda m: 16 * m if 65 <= m <= 128 else -1, "g7": lambda m: 16 * m + 8 if 64 <= m <= 127 else -1,
         "g5": lambda m: 8 * m if 65 <= m <= 128 else -1, "g3": lambda m: 8 * m + 4 if 64 <= m <= 127 else -1}
    top = {"g9": 129, "g7": 128, "g5": 162, "g3": 161}
    for k, (b, n) in SEC.items():
        for x in range(n):
            out.append(near(576 - x) if k == "near" else g[k](top[k] - x))
    return out


def chunk_table():
    out = []

    def add(sec, x0, dst):
        x = SEC[sec][0] + x0
        out.append((2 * x if x % 2 == 0 else LINB + 2 * (x + 1), dst))

    for sg in range(8):
        for sl in range(73):
            add("near", 8 * (sl + 1) - sg, (sg * TS8 + T_NEAR + sl) * 16)
        for sl in range(11):
            add("g9", 8 * (sl + 1) - sg, (sg * TS8 + T_G9 + sl) * 16)
            add("g7", 8 * (sl + 1) - sg, (sg * TS8 + T_G7 + sl) * 16)
    for q in range(4):
        for sl in range(15):
            add("g5", 8 * (sl + 1) - 2 * q, T4_BASE + (q * TS4 + T_G5 + sl) * 16)
            add("g3", 8 * (sl + 1) - 2 * q, T4_BASE + (q * TS4 + T_G3 + sl) * 16)
    return out


def tables():
    t1 = [ms.part_offset(p) if p >= 0 else 3072 for p in lin_sources()]
    t1 += [3072] * (1088 - len(t1))
    t2 = chunk_table()
    t2 += [t2[-1]] * (1024 - len(t2))
    s = ".p2align 7\nL_tab1:\n"
    for i in range(0, len(t1), 16):
        s += ".short " + ", ".join(str(v) for v in t1[i:i + 16]) + "\n"
    s += "L_tab2:\n"
    for i in range(0, len(t2), 8):
        s += ".long " + ", ".join(str(a | (b << 16)) for a, b in t2[i:i + 8]) + "\n"
    return s + ".fill 32, 4, 0\n"


def slab_offsets(a, dst, rowbytes):
    for e in range(5):
        a(f"""
        v_add_u32 v{dst + e}, {64 * e}, v1
        v_mul_u32_u24 v{dst + 5}, 205, v{dst + e}
        v_lshrrev_b32 v{dst + 5}, 11, v{dst + 5}
        v_mul_u32_u24 v{dst + 6}, 10, v{dst + 5}
        v_sub_u32 v{dst + e}, v{dst + e}, v{dst + 6}
        v_and_b32 v{dst + 6}, 3, v{dst + 5}
        v_bfe_u32 v{dst + 7}, v{dst + 5}, 2, 2
        v_lshl_or_b32 v{dst + 6}, v{dst + 7}, 3, v{dst + 6}
        v_lshrrev_b32 v{dst + 7}, 4, v{dst + 5}
        v_lshl_or_b32 v{dst + 6}, v{dst + 7}, 2, v{dst + 6}
        v_mul_u32_u24 v{dst + 6}, {rowbytes}, v{dst + 6}
        v_lshl_add_u32 v{dst + e}, v{dst + e}, 4, v{dst + 6}
        """)


def wo_dma(a, z0, per):
    a(f"""
    s_sub_u32 s{T0}, s{S_WAVE}, 4
    s_mul_i32 s{T0}, s{T0}, {per}
    s_add_u32 s{T0}, s{T0}, {z0}
    s_mul_i32 s{T0 + 1}, s{T0}, {32 * 1280}
    s_mul_i32 s{T0 + 2}, s{S_HG}, 160
    s_add_u32 s{T0 + 1}, s{T0 + 1}, s{T0 + 2}
    s_mul_i32 s{T0}, s{T0}, 5120
    """)
    add64(a, T0 + 2, P_WO, f"s{T0 + 1}")
    for z in range(per):
        if z:
            add64(a, T0 + 2, T0 + 2, 32 * 1280)
        for e in range(5):
            a(f"s_add_u32 m0, s{T0}, {R_X + z * 5120 + e * 1024}")
            a(f"global_load_lds_dwordx4 v{24 + e}, {sp(T0 + 2)}")


def post_gemm(a):
    a.label("L_a1_post")
    a(f"""
    s_cmp_lt_u32 s{S_WAVE}, 4
    s_cbranch_scc1 L_pg_lo
    s_cmp_eq_u32 s{S_WAVE}, 7
    s_cbranch_scc0 L_pg_n9
    s_cmp_eq_u32 s{S_LAYER}, 0
    s_cbranch_scc0 L_pg_n9
    s_mov_b32 s{T0 + 1}, 2
    """)
    g_start.param_addr(a, S_CH + 2, T0 + 1)
    g_start.param_loads(a)
    a.label("L_pg_n9")
    slab_offsets(a, 24, 1280)
    wo_dma(a, 8, 3)
    a(f"""
    s_waitcnt lgkmcnt(0)
    s_barrier
    s_barrier
    """)
    wo_dma(a, 0, 2)
    a(f"""
    s_cmp_eq_u32 s{S_WAVE}, 7
    s_cbranch_scc0 L_pg_join
    s_cmp_eq_u32 s{S_LAYER}, 0
    s_cbranch_scc0 L_pg_join
    """)
    for r in range(6):
        a(f"v_mov_b32 v{180 + r}, v{RES + r}")
    a(f"""
    s_mov_b32 s{T0 + 4}, {R_T + 8 * UB}
    s_waitcnt vmcnt(25)
    """)
    g_start.ssm_unit(a, T0 + 4)
    for r in range(6):
        a(f"v_mov_b32 v{RES + r}, v{180 + r}")
    a("s_branch L_pg_join")
    a.label("L_pg_lo")
    a(f"""
    s_waitcnt lgkmcnt(0)
    s_barrier
    """)
    stamp_l(a, 7, 14)
    g_a1.attention(a)
    stamp_l(a, 8, 14)
    a(f"""
    s_lshl_b32 s{T0}, s{S_LAYER}, 2
    s_add_u32 s{T0}, s{T0}, {L_CTR + 16}
    s_waitcnt vmcnt(0)
    """)
    lds_last(a, f"s{T0}", 4, 2, 4)
    a(f"""
    s_cbranch_scc0 L_pg_np
    s_lshl_b32 s{T0}, s{S_RB}, 3
    s_add_u32 s{T0 + 1}, s{T0}, s{S_HG}
    s_lshl_b32 s{T0 + 1}, s{T0 + 1}, 7
    s_add_u32 s{T0 + 1}, s{T0 + 1}, s{S_FOFF}
    s_add_u32 s{T0 + 1}, s{T0 + 1}, {FLAGS + ST_O0 * FSTAGE}
    """)
    publish(a, T0 + 1, 2, 4)
    a.label("L_pg_np")
    stamp_l(a, 9, 14)
    a(f"""
    s_cmp_eq_u32 s{S_WAVE}, 0
    s_cbranch_scc0 L_pg_join
    s_lshl_b32 s{T0}, s{S_RB}, 10
    s_add_u32 s{T0}, s{T0}, s{S_FOFF}
    s_add_u32 s{T0}, s{T0}, {FLAGS + ST_O0 * FSTAGE}
    v_and_b32 v2, 7, v1
    v_lshl_add_u32 v2, v2, 7, s{T0}
    """)
    poll(a, [2], 4)
    a.label("L_pg_join")


def treduce(a, V, even, lo2, tmp):
    K, S = tmp, tmp + 4
    for p in range(2):
        for c in range(2):
            a(f"v_cndmask_b32 v{K + 2 * p + c}, v{V[2 * p + 1][c]}, v{V[2 * p][c]}, {sp(even)}")
            a(f"v_cndmask_b32 v{S + 2 * p + c}, v{V[2 * p][c]}, v{V[2 * p + 1][c]}, {sp(even)}")
    for i in range(4):
        a(f"v_add_f32_dpp v{K + i}, v{S + i}, v{K + i} quad_perm:[1,0,3,2] row_mask:0xf bank_mask:0xf")
    for c in range(2):
        a(f"v_cndmask_b32 v{S + c}, v{K + c}, v{K + 2 + c}, {sp(lo2)}")
        a(f"v_cndmask_b32 v{K + c}, v{K + 2 + c}, v{K + c}, {sp(lo2)}")
    for c in range(2):
        a(f"v_add_f32_dpp v{K + c}, v{S + c}, v{K + c} quad_perm:[2,3,0,1] row_mask:0xf bank_mask:0xf")
    for sh in (4, 8):
        for c in range(2):
            a(f"v_add_f32_dpp v{K + c}, v{K + c}, v{K + c} row_ror:{sh} row_mask:0xf bank_mask:0xf")


def a2(a):
    OF, AC, RG, NRG = 16, 56, 76, 5
    a(f"""
    v_and_b32 v6, 15, v1
    v_lshrrev_b32 v7, 4, v1
    s_and_b32 s{T0}, s{S_WAVE}, 3
    s_lshr_b32 s{T0 + 1}, s{S_WAVE}, 2
    s_lshl_b32 s{T0 + 2}, s{S_RB}, 2
    s_add_u32 s{T0 + 2}, s{T0 + 2}, s{T0}
    s_mul_i32 s{T0 + 2}, s{T0 + 2}, 20480
    s_mul_i32 s{T0 + 3}, s{T0 + 1}, 10240
    s_add_u32 s{T0 + 2}, s{T0 + 2}, s{T0 + 3}
    s_add_u32 s{T0 + 2}, s{T0 + 2}, s{S_BOFF}
    s_add_u32 s{T0 + 2}, s{T0 + 2}, {OB}
    v_lshl_add_u32 v2, v1, 4, s{T0 + 2}
    v_add_u32 v3, 4096, v2
    v_add_u32 v4, 8192, v2
    s_mul_i32 s{T0 + 3}, s{T0 + 1}, 51200
    s_add_u32 s{T0 + 3}, s{T0 + 3}, {R_X}
    v_lshrrev_b32 v5, 2, v1
    v_mul_u32_u24 v5, 160, v5
    v_and_b32 v8, 3, v1
    v_lshl_add_u32 v5, v8, 3, v5
    v_add_u32 v5, s{T0 + 3}, v5
    s_waitcnt vmcnt(0) lgkmcnt(0)
    s_barrier
    """)
    stamp_l(a, 10, 14)
    for s in range(10):
        a(f"global_load_dwordx4 {vq(OF + 4 * s)}, v{2 + s // 4}, {sp(P_WS)} offset:{1024 * (s % 4)} sc1")
    seq = [(s, nt) for s in range(10) for nt in range(5)]

    def issue(i):
        s, nt = seq[i]
        f = RG + 4 * (i % NRG)
        a(f"ds_read_b64_tr_b16 v[{f}:{f + 1}], v5 offset:{s * 5120 + 32 * nt}")
        a(f"ds_read_b64_tr_b16 v[{f + 2}:{f + 3}], v5 offset:{s * 5120 + 32 * nt + 2560}")

    AH = NRG - 1
    for i in range(AH):
        issue(i)
    a(f"""
    s_mul_i32 s{T0 + 2}, s{T0}, 5120
    s_add_u32 s{T0 + 2}, s{T0 + 2}, {R_X}
    v_lshl_add_u32 v2, v1, 4, s{T0 + 2}
    s_mul_i32 s{T0 + 2}, s{S_HG}, 80
    s_mul_i32 s{T0 + 3}, s{T0 + 1}, 48
    s_add_u32 s{T0 + 2}, s{T0 + 2}, s{T0 + 3}
    s_lshl_b32 s{T0 + 2}, s{T0 + 2}, 12
    s_lshl_b32 s{T0 + 3}, s{S_RB}, 7
    s_add_u32 s{T0 + 2}, s{T0 + 2}, s{T0 + 3}
    s_lshl_b32 s{T0 + 3}, s{T0}, 5
    s_add_u32 s{T0 + 2}, s{T0 + 2}, s{T0 + 3}
    s_add_u32 s{T0 + 2}, s{T0 + 2}, s{S_BOFF}
    s_add_u32 s{T0 + 2}, s{T0 + 2}, {X1T}
    v_lshl_add_u32 v3, v6, 12, s{T0 + 2}
    v_lshl_add_u32 v3, v7, 3, v3
    s_mul_i32 s{T0 + 2}, s{S_LAYER}, {STATS_L}
    s_lshl_b32 s{T0 + 3}, s{S_RB}, 13
    s_add_u32 s{T0 + 2}, s{T0 + 2}, s{T0 + 3}
    s_lshl_b32 s{T0 + 3}, s{T0}, 7
    s_add_u32 s{T0 + 2}, s{T0 + 2}, s{T0 + 3}
    s_add_u32 s{T0 + 2}, s{T0 + 2}, {STATS}
    v_lshl_add_u32 v4, v6, 9, s{T0 + 2}
    v_lshl_add_u32 v4, v7, 5, v4
    s_lshl_b32 s{T0 + 3}, s{S_HG}, 1
    s_add_u32 s{T0 + 3}, s{T0 + 3}, s{T0 + 1}
    s_lshl_b32 s{T0 + 3}, s{T0 + 3}, 9
    s_add_u32 s{T0 + 2}, s{T0 + 2}, s{T0 + 3}
    v_lshl_add_u32 v9, v7, 2, v8
    v_lshl_add_u32 v9, v9, 3, s{T0 + 2}
    v_and_b32 v8, 1, v1
    v_cmp_eq_u32 {sp(T0 + 4)}, 0, v8
    v_and_b32 v8, 2, v1
    v_cmp_eq_u32 {sp(T0 + 6)}, 0, v8
    """)
    for i, (s, nt) in enumerate(seq):
        if i + AH < len(seq):
            issue(i + AH)
        w = f"lgkmcnt({2 * min(AH, len(seq) - 1 - i)})"
        if nt == 0:
            w = f"vmcnt({9 - s}) " + w
        a(f"s_waitcnt {w}")
        c = vq(AC + 4 * nt)
        a(f"v_mfma_f32_16x16x32_bf16 {c}, {vq(OF + 4 * s)}, {vq(RG + 4 * (i % NRG))}, {c if s else 0}")
    a("s_barrier")
    stamp_l(a, 11, 14)
    a(f"""
    s_cmp_ge_u32 s{S_WAVE}, 4
    s_cbranch_scc1 L_a2_k1
    """)
    for kh in range(2):
        if kh:
            a.label("L_a2_k1")
        keep = [0, 1, 2] if kh == 0 else [3, 4]
        send = [3, 4] if kh == 0 else [0, 1, 2]
        N = range(len(keep))
        for nt in send:
            a(f"ds_write_b128 v2, {vq(AC + 4 * nt)} offset:{1024 * nt}")
        a("s_waitcnt lgkmcnt(0)")
        a("s_barrier")
        PA, XF, XB, TM = 16, 28, 40, 46
        for i, nt in enumerate(keep):
            a(f"ds_read_b128 {vq(PA + 4 * i)}, v2 offset:{1024 * nt}")
        for i in N:
            a(f"""
            v_lshlrev_b32 v{XF + 4 * i}, 16, v{RES + 2 * i}
            v_and_b32 v{XF + 4 * i + 1}, 0xffff0000, v{RES + 2 * i}
            v_lshlrev_b32 v{XF + 4 * i + 2}, 16, v{RES + 2 * i + 1}
            v_and_b32 v{XF + 4 * i + 3}, 0xffff0000, v{RES + 2 * i + 1}
            """)
        a("s_waitcnt lgkmcnt(0)")

        def unpack(d, s):
            a(f"""
            v_lshlrev_b32 v{d}, 16, v{s}
            v_and_b32 v{d + 1}, 0xffff0000, v{s}
            v_lshlrev_b32 v{d + 2}, 16, v{s + 1}
            v_and_b32 v{d + 3}, 0xffff0000, v{s + 1}
            """)

        def pack(d, s):
            a(f"v_cvt_pk_bf16_f32 v{d}, v{s}, v{s + 1}")
            a(f"v_cvt_pk_bf16_f32 v{d + 1}, v{s + 2}, v{s + 3}")

        for i, nt in enumerate(keep):
            for r in range(4):
                a(f"v_add_f32 v{PA + 4 * i + r}, v{PA + 4 * i + r}, v{AC + 4 * nt + r}")
        for i in N:
            pack(XB + 2 * i, PA + 4 * i)
        for i in N:
            unpack(PA + 4 * i, XB + 2 * i)
        for i in N:
            for r in range(4):
                a(f"v_add_f32 v{XF + 4 * i + r}, v{XF + 4 * i + r}, v{PA + 4 * i + r}")
        for i in N:
            pack(XB + 2 * i, XF + 4 * i)
        for i in N:
            unpack(XF + 4 * i, XB + 2 * i)
        SU, SQ = 56, 60
        for r in range(4):
            a(f"v_add_f32 v{SU + r}, v{XF + r}, v{XF + 4 + r}")
            a(f"v_mul_f32 v{SQ + r}, v{XF + r}, v{XF + r}")
        for r in range(4):
            a(f"v_fmac_f32 v{SQ + r}, v{XF + 4 + r}, v{XF + 4 + r}")
        if kh == 0:
            for r in range(4):
                a(f"v_add_f32 v{SU + r}, v{SU + r}, v{XF + 8 + r}")
                a(f"v_fmac_f32 v{SQ + r}, v{XF + 8 + r}, v{XF + 8 + r}")
        treduce(a, [(SU + r, SQ + r) for r in range(4)], T0 + 4, T0 + 6, 64)
        a(f"""
        v_or_b32 v65, 0x80000000, v65
        s_mov_b32 exec_lo, 0x000f000f
        s_mov_b32 exec_hi, 0x000f000f
        global_store_dwordx2 v9, v[64:65], {sp(P_WS)} sc1
        s_mov_b64 exec, -1
        """)
        for i in N:
            if i:
                a(f"v_add_u32 v{5 + i}, {65536 * i}, v3")
            a(f"global_store_dwordx2 v{3 if i == 0 else 5 + i}, v[{XB + 2 * i}:{XB + 2 * i + 1}], {sp(P_WS)} sc1")
        stamp_l(a, 12, 14)
        L = uid("st")
        a(f"s_mov_b32 s{T0 + 15}, 0")
        a.label(L)
        a(f"""
        global_load_dwordx4 v[56:59], v4, {sp(P_WS)} sc1
        global_load_dwordx4 v[60:63], v4, {sp(P_WS)} offset:16 sc1
        s_add_u32 s{T0 + 15}, s{T0 + 15}, 1
        s_waitcnt vmcnt(0)
        v_and_b32 v64, v57, v59
        v_and_b32 v65, v61, v63
        v_and_b32 v64, v64, v65
        v_cmp_le_i32 vcc, 0, v64
        s_cmp_gt_u32 s{T0 + 15}, {SPIN_LIMIT}
        s_cbranch_scc1 L_end
        s_cbranch_vccnz {L}
        """)
        stamp_l(a, 13, 14)
        treduce(a, [(56 + 2 * r, 57 + 2 * r) for r in range(4)], T0 + 4, T0 + 6, 64)
        a(f"""
        v_mul_f32 v64, 0x3acccccd, v64
        v_mul_f32 v65, 0xbacccccd, v65
        v_fma_f32 v65, -v64, v64, v65
        v_max_f32 v65, 0, v65
        v_cvt_pk_bf16_f32 v64, v64, v65
        v_and_b32 v65, 0xffff0000, v64
        v_lshlrev_b32 v64, 16, v64
        v_add_f32 v65, 0x3727c5ac, v65
        v_cvt_pk_bf16_f32 v65, v65, v65
        v_lshlrev_b32 v65, 16, v65
        v_sqrt_f32 v65, v65
        v_cvt_pk_bf16_f32 v65, v65, v65
        v_lshlrev_b32 v65, 16, v65
        v_rcp_f32 v65, v65
        """)
        MN, RSD = 56, 60
        for r in range(4):
            a(f"v_mov_b32_dpp v{MN + r}, v64 quad_perm:[{r},{r},{r},{r}] row_mask:0xf bank_mask:0xf")
        for r in range(4):
            a(f"v_mov_b32_dpp v{RSD + r}, v65 quad_perm:[{r},{r},{r},{r}] row_mask:0xf bank_mask:0xf")
        for i in N:
            for r in range(4):
                a(f"v_sub_f32 v{XF + 4 * i + r}, v{XF + 4 * i + r}, v{MN + r}")
        for i in N:
            pack(XB + 2 * i, XF + 4 * i)
        for i in N:
            unpack(XF + 4 * i, XB + 2 * i)
        for i in N:
            for r in range(4):
                a(f"v_mul_f32 v{XF + 4 * i + r}, v{XF + 4 * i + r}, v{RSD + r}")
        for i in N:
            pack(XB + 2 * i, XF + 4 * i)
        for i in N:
            unpack(XF + 4 * i, XB + 2 * i)
        add64(a, T0 + 8, P_WS, UT - X1T)
        for i in N:
            a(f"v_cvt_pk_f16_f32 v{XB + 2 * i}, v{XF + 4 * i}, v{XF + 4 * i + 1}")
            a(f"v_cvt_pk_f16_f32 v{XB + 2 * i + 1}, v{XF + 4 * i + 2}, v{XF + 4 * i + 3}")
            a(f"global_store_dwordx2 v{3 if i == 0 else 5 + i}, v[{XB + 2 * i}:{XB + 2 * i + 1}], {sp(T0 + 8)} sc1")
        if kh == 0:
            a("s_branch L_a2_done")
    a.label("L_a2_done")


def tap_table_loads(a):
    a(f"""
    s_getpc_b64 {sp(T0 + 8)}
    """)
    a.label("L_tbref")
    a(f"""
    s_add_u32 s{T0 + 8}, s{T0 + 8}, L_tab1-L_tbref
    s_addc_u32 s{T0 + 9}, s{T0 + 9}, 0
    v_lshlrev_b32 v70, 1, v0
    v_lshlrev_b32 v71, 2, v0
    v_and_b32 v72, 0x7e, v70
    global_load_ushort v80, v70, {sp(T0 + 8)}
    global_load_ushort v81, v70, {sp(T0 + 8)} offset:1024
    global_load_ushort v82, v72, {sp(T0 + 8)} offset:2048
    global_load_dword v83, v71, {sp(T0 + 8)} offset:2176
    v_add_u32 v71, 2048, v71
    global_load_dword v84, v71, {sp(T0 + 8)} offset:2176
    """)


def tap_build(a):
    VA = 16
    for k in range(3):
        for ch in range(3):
            for t in range(3):
                a(f"ds_read_b32 v{VA + 9 * k + 3 * ch + t}, v{80 + k} offset:{R_T + (3 * ch + t) * UB}")
        if k < 2:
            a(f"s_waitcnt lgkmcnt({6})")
    a(f"""
    v_lshlrev_b32 v70, 1, v0
    v_and_b32 v72, 0x7e, v70
    v_add_u32 v70, {LIN}, v70
    v_add_u32 v72, {LIN + 2048}, v72
    v_mov_b32 v73, {L_MAX}
    s_waitcnt lgkmcnt(0)
    """)
    V = lambda k, ch: VA + 9 * k + 3 * ch
    for t in (1, 2):
        for k in range(3):
            for ch in range(3):
                a(f"v_add_f32 v{V(k, ch)}, v{V(k, ch)}, v{V(k, ch) + t}")
    for ch in range(3):
        a(f"v_max3_f32 v{48 + ch}, abs(v{V(0, ch)}), abs(v{V(1, ch)}), abs(v{V(2, ch)})")
    for sh in (1, 2, 4, 8):
        for ch in range(3):
            a(f"v_max_f32_dpp v{48 + ch}, v{48 + ch}, v{48 + ch} row_ror:{sh} row_mask:0xf bank_mask:0xf")
    a("s_mov_b32 exec_lo, 0x00010001")
    a("s_mov_b32 exec_hi, 0x00010001")
    for ch in range(3):
        a(f"ds_max_f32 v73, v{48 + ch} offset:{4 * ch}")
    a(f"""
    s_mov_b64 exec, -1
    s_waitcnt lgkmcnt(0)
    s_barrier
    ds_read_b128 v[52:55], v73
    v_and_b32 v74, 0xffff, v83
    v_lshrrev_b32 v75, 16, v83
    v_and_b32 v76, 0xffff, v84
    v_lshrrev_b32 v77, 16, v84
    v_add_u32 v74, {LIN}, v74
    v_add_u32 v76, {LIN}, v76
    s_waitcnt lgkmcnt(0)
    """)
    for ch in range(3):
        a(f"v_frexp_exp_i32_f32 v{52 + ch}, v{52 + ch}")
    for ch in range(3):
        a(f"v_sub_u32 v{48 + ch}, 14, v{52 + ch}")
        a(f"v_subrev_u32 v{52 + ch}, 22, v{52 + ch}")
    for ch in range(3):
        a(f"v_ldexp_f32 v{52 + ch}, 1.0, v{52 + ch}")
    for k in range(3):
        for ch in range(3):
            a(f"v_ldexp_f32 v{V(k, ch)}, v{V(k, ch)}, v{48 + ch}")
    for k in range(3):
        for ch in range(3):
            a(f"v_cvt_f16_f32 v{V(k, ch)}, v{V(k, ch)}")
    a(f"ds_write_b128 v73, v[52:55] offset:16")
    for k in range(3):
        for ch in range(3):
            ad, o = (70, 1024 * k) if k < 2 else (72, 0)
            a(f"ds_write_b16 v{ad}, v{V(k, ch)} offset:{o + 2 * LINB * ch}")
            a(f"ds_write_b16 v{ad}, v{V(k, ch)} offset:{o + 2 * LINB * ch + LINB + 2}")
    for ch in (1, 2):
        a(f"v_add_u32 v{56 + 2 * ch}, {2 * LINB * ch}, v74")
        a(f"v_add_u32 v{57 + 2 * ch}, {2 * LINB * ch}, v76")
    a(f"""
    s_waitcnt lgkmcnt(0)
    s_barrier
    """)
    for ch in range(3):
        for c in range(2):
            ad = (74 + 2 * c) if ch == 0 else 56 + 2 * ch + c
            d = 16 + 8 * ch + 4 * c
            a(f"ds_read2_b32 v[{d}:{d + 1}], v{ad} offset0:0 offset1:1")
            a(f"ds_read2_b32 v[{d + 2}:{d + 3}], v{ad} offset0:2 offset1:3")
    for ch in range(3):
        a(f"s_waitcnt lgkmcnt({8 - 4 * ch})")
        for c in range(2):
            d = 16 + 8 * ch + 4 * c
            a(f"ds_write_b128 v{75 + 2 * c}, {vq(d)} offset:{R_T + TAP_CH * ch}")
        if ch < 2:
            pass
    a("s_waitcnt lgkmcnt(0)")
    a("s_barrier")


PROGS = {1: [0, 1, 2, 3], 2: [4, 5], 3: [6, 7]}


def conv_prog(a, P):
    J = PROGS[P]
    AC, X1R, RG, NRG, EU = 16, 32, 40, 12, 88
    TN, T9, T4, DN, D5, D9 = 2, 3, 4, 5, 6, 7
    ops = []
    for kind, keys in (("near", range(18)), ("g5", (2, 3, 4)), ("g3", (2, 3, 4)), ("g9", (64, 80, 96, 112)), ("g7", (64, 80, 96, 112))):
        for ti in keys:
            for j in J:
                for k2, t2, di in conv_steps(j):
                    if k2 == kind and t2 == ti:
                        ops.append((j, kind, ti, di))
    frs, use = [], []
    last = None
    for j, kind, ti, di in ops:
        if last != (kind, ti):
            frs.append(("T", kind, ti))
            tix = len(frs) - 1
            last = (kind, ti)
        frs.append(("D", kind, di))
        use.append((tix, len(frs) - 1))
    lastuse = {}
    for m, (t, d) in enumerate(use):
        lastuse[t] = m
        lastuse[d] = m
    nread = lambda f: 2 if (f[0] == "D" and f[1] != "near") else 1

    def issue(i):
        w, kind, x = frs[i]
        r = RG + 4 * (i % NRG)
        if w == "T":
            if kind == "near":
                a(f"ds_read_b128 {vq(r)}, v{TN} offset:{16 * (68 - 4 * x)}")
            elif kind in ("g9", "g7"):
                a(f"ds_read_b128 {vq(r)}, v{T9} offset:{16 * ((T_G9 if kind == 'g9' else T_G7) + 14 - x // 8)}")
            else:
                a(f"ds_read_b128 {vq(r)}, v{T4} offset:{16 * ((T_G5 if kind == 'g5' else T_G3) + 16 - 4 * x)}")
        elif kind == "near":
            a(f"ds_read_b128 {vq(r)}, v{DN} offset:{64 * x + 448}")
        else:
            base, o, h = {"g5": (D5, D_U5 + 512 * x + 8, 64), "g3": (D5, D_U3 + 512 * x + 16, 64),
                          "g9": (D9, D_U9 + 1024 * x + 8, 128), "g7": (D9, D_U7 + 1024 * x + 24, 128)}[kind]
            a(f"ds_read_b64_tr_b16 v[{r}:{r + 1}], v{base} offset:{o}")
            a(f"ds_read_b64_tr_b16 v[{r + 2}:{r + 3}], v{base} offset:{o + h}")

    issued = 0
    first = set()
    for m, (j, kind, ti, di) in enumerate(ops):
        need = use[m][1]
        while issued < len(frs) and issued < need + 1 + 8 and (issued < NRG or lastuse[issued - NRG] < m) \
                and sum(nread(f) for f in frs[need + 1:issued + 1]) <= 12:
            issue(issued)
            issued += 1
        assert issued > need
        a(f"s_waitcnt lgkmcnt({sum(nread(f) for f in frs[need + 1:issued])})")
        T, D = vq(RG + 4 * (use[m][0] % NRG)), vq(RG + 4 * (need % NRG))
        c = vq(AC + 4 * J.index(j))
        A, B = (T, D) if kind == "near" else (D, T)
        a(f"v_mfma_f32_16x16x32_f16 {c}, {A}, {B}, {c if j in first else 0}")
        first.add(j)
    for i, j in enumerate(J):
        a(f"ds_read_b64 v[{EU + 2 * i}:{EU + 2 * i + 1}], v8 offset:{512 * j}")
    N = range(len(J))
    Y, U = 40, 56
    for i in N:
        for r in range(4):
            a(f"v_mul_f32 v{Y + 4 * i + r}, v{AC + 4 * i + r}, v10")

    def pack(d, s):
        a(f"v_cvt_pk_bf16_f32 v{d}, v{s}, v{s + 1}")
        a(f"v_cvt_pk_bf16_f32 v{d + 1}, v{s + 2}, v{s + 3}")

    def unpack(d, s):
        a(f"""
        v_lshlrev_b32 v{d}, 16, v{s}
        v_and_b32 v{d + 1}, 0xffff0000, v{s}
        v_lshlrev_b32 v{d + 2}, 16, v{s + 1}
        v_and_b32 v{d + 3}, 0xffff0000, v{s + 1}
        """)

    PKD = 72
    for i in N:
        pack(PKD + 2 * i, Y + 4 * i)
    for i in N:
        unpack(Y + 4 * i, PKD + 2 * i)
    a("s_waitcnt vmcnt(0) lgkmcnt(0)")
    for i in N:
        for r in range(4):
            a(f"v_fma_mix_f32 v{U + 4 * i + r}, v{EU + 2 * i + r // 2}, v11, 0 op_sel:[{r % 2},0,0] op_sel_hi:[1,0,0]")
    for i in N:
        pack(PKD + 2 * i, U + 4 * i)
    for i in N:
        unpack(U + 4 * i, PKD + 2 * i)
    for i in N:
        for r in range(4):
            a(f"v_add_f32 v{Y + 4 * i + r}, v{Y + 4 * i + r}, v{U + 4 * i + r}")
    for i in N:
        pack(PKD + 2 * i, Y + 4 * i)
    for i in N:
        unpack(Y + 4 * i, PKD + 2 * i)
        unpack(U + 4 * i, X1R + 2 * i)
    for i in N:
        for r in range(4):
            a(f"v_add_f32 v{Y + 4 * i + r}, v{Y + 4 * i + r}, v{U + 4 * i + r}")
    for i in N:
        pack(PKD + 2 * i, Y + 4 * i)
    L = uid("fin")
    a(f"""
    s_cmp_eq_u32 s{S_LAYER}, 1
    s_cbranch_scc1 {L}
    """)
    add64(a, T0 + 8, P_WS, X2T - X1T)
    for i, j in enumerate(J):
        a(f"global_store_dwordx2 v9, v[{PKD + 2 * i}:{PKD + 2 * i + 1}], {sp(T0 + 8)} offset:{512 * j} sc1")
    a("s_branch L_b_done")
    a.label(L)
    for i, j in enumerate(J):
        a(f"v_add_u32 v12, {256 * 1280 * j}, v13")
        for r in range(4):
            hi = "_d16_hi" if r % 2 else ""
            a(f"global_store_short{hi} v12, v{PKD + 2 * i + r // 2}, {sp(P_OUT)} offset:{1280 * r}")
    a("s_branch L_b_done")


def box_chunk(a, W, dst):
    O, U3, U5, U7, U9, P = 48, 56, 60, 64, 68, 72
    L = uid("bx")
    a(f"""
    ds_write_b128 v{dst}, {vq(W + 4)} offset:{D_U + 512}
    s_and_b32 s{T0 + 8}, s{S_WAVE}, 3
    s_cmp_eq_u32 s{T0 + 8}, 3
    s_cbranch_scc1 {L}
    """)
    for j in range(7):
        a(f"v_alignbyte_b32 v{O + j}, v{W + j + 1}, v{W + j}, 2")
    for q in range(4):
        a(f"v_pk_add_f16 v{P + q}, v{O + 1 + q}, v{O + 2 + q}")
        a(f"v_pk_add_f16 v{U5 + q}, v{W + 1 + q}, v{W + 3 + q}")
    for q in range(4):
        a(f"v_pk_add_f16 v{U3 + q}, v{W + 2 + q}, v{P + q}")
    for q in range(4):
        a(f"v_pk_add_f16 v{U5 + q}, v{U5 + q}, v{U3 + q}")
    a(f"""
    ds_write_b128 v{dst}, {vq(U3)} offset:{D_U3 + 32}
    ds_write_b128 v{dst}, {vq(U5)} offset:{D_U5 + 32}
    s_cmp_ge_u32 s{T0 + 8}, 2
    s_cbranch_scc1 {L}
    """)
    for q in range(4):
        a(f"v_pk_add_f16 v{U7 + q}, v{O + q}, v{O + 3 + q}")
        a(f"v_pk_add_f16 v{U9 + q}, v{W + q}, v{W + 4 + q}")
    for q in range(4):
        a(f"v_pk_add_f16 v{U7 + q}, v{U7 + q}, v{U5 + q}")
    for q in range(4):
        a(f"v_pk_add_f16 v{U9 + q}, v{U9 + q}, v{U7 + q}")
    a(f"""
    ds_write_b128 v{dst}, {vq(U7)} offset:{D_U7 + 32}
    ds_write_b128 v{dst}, {vq(U9)} offset:{D_U9 + 32}
    """)
    a.label(L)


def conv(a):
    a(f"""
    s_and_b32 s{T0 + 2}, s{S_WAVE}, 3
    s_lshr_b32 s{T0 + 3}, s{S_WAVE}, 2
    s_cmp_eq_u32 s{T0 + 2}, 3
    s_cselect_b32 s{T0}, s{T0 + 3}, s{T0 + 2}
    s_add_u32 s{T0 + 1}, s{T0 + 3}, 1
    s_cmp_eq_u32 s{T0 + 2}, 3
    s_cselect_b32 s{T0 + 1}, 3, s{T0 + 1}
    s_cmp_eq_u32 s{T0 + 2}, 2
    s_cbranch_scc0 L_b_role
    s_add_u32 s{T0 + 1}, s{T0 + 1}, s{S_ODD}
    s_cmp_eq_u32 s{T0 + 1}, 2
    s_cselect_b32 s{T0 + 4}, 1, 0
    s_andn2_b32 s{T0 + 4}, s{T0 + 4}, s{S_ODD}
    s_cmp_eq_u32 s{T0 + 4}, 1
    s_cselect_b32 s{T0 + 1}, 0, s{T0 + 1}
    """)
    a.label("L_b_role")
    a(f"""
    s_cmp_eq_u32 s{T0}, 1
    s_cselect_b32 s{T0 + 2}, s{S_CH + 1}, s{S_CH}
    s_cmp_eq_u32 s{T0}, 2
    s_cselect_b32 s{T0 + 2}, s{S_CH + 2}, s{T0 + 2}
    s_mul_i32 s{T0 + 3}, s{T0}, {TAP_CH}
    s_mul_i32 s{T0 + 4}, s{T0}, {DATA_CH}
    s_add_u32 s{T0 + 4}, s{T0 + 4}, {R_X}
    v_and_b32 v14, 15, v1
    v_lshrrev_b32 v15, 4, v1
    v_and_b32 v16, 7, v1
    v_mul_u32_u24 v16, {TS8}, v16
    v_bfe_u32 v17, v1, 3, 1
    v_sub_u32 v16, v16, v17
    v_add3_u32 v3, v16, v15, 1
    v_lshl_add_u32 v3, v3, 4, s{T0 + 3}
    v_and_b32 v17, 1, v15
    v_add3_u32 v16, v16, v17, 3
    v_and_b32 v18, 2, v15
    v_sub_u32 v16, v16, v18
    v_lshl_add_u32 v2, v16, 4, s{T0 + 3}
    v_and_b32 v16, 3, v1
    v_mul_u32_u24 v16, {TS4}, v16
    v_lshrrev_b32 v19, 2, v14
    v_sub_u32 v16, v16, v19
    v_add3_u32 v16, v16, v15, 3
    s_add_u32 s{T0 + 5}, s{T0 + 3}, {T4_BASE}
    v_lshl_add_u32 v4, v16, 4, s{T0 + 5}
    v_lshlrev_b32 v16, 5, v14
    v_lshl_add_u32 v5, v17, 4, v16
    v_lshlrev_b32 v18, 4, v18
    v_sub_u32 v5, v5, v18
    s_add_u32 s{T0 + 5}, s{T0 + 4}, {D_U + 64}
    v_add_u32 v5, s{T0 + 5}, v5
    v_and_b32 v17, 3, v1
    v_lshl_add_u32 v17, v17, 3, s{T0 + 4}
    v_lshl_add_u32 v6, v15, 7, v17
    v_lshl_add_u32 v6, v19, 4, v6
    v_lshl_add_u32 v7, v15, 8, v17
    v_lshl_add_u32 v7, v19, 5, v7
    v_lshl_add_u32 v16, v15, 3, v16
    s_add_u32 s{T0 + 5}, s{T0 + 4}, {D_U + 512}
    v_add_u32 v8, s{T0 + 5}, v16
    s_lshl_b32 s{T0 + 5}, s{T0 + 2}, 12
    s_add_u32 s{T0 + 5}, s{T0 + 5}, s{S_BOFF}
    s_add_u32 s{T0 + 5}, s{T0 + 5}, {X1T}
    v_add_u32 v9, s{T0 + 5}, v16
    v_lshlrev_b32 v13, 2, v14
    v_add_u32 v13, v13, v15
    v_mul_u32_u24 v13, {4 * 1280}, v13
    s_lshl_b32 s{T0 + 5}, s{T0 + 2}, 1
    v_add_u32 v13, s{T0 + 5}, v13
    v_mov_b32 v12, s{T0 + 5}
    global_load_ushort v11, v12, {sp(P_DS)}
    s_lshl_b32 s{T0 + 5}, s{T0}, 2
    s_add_u32 s{T0 + 5}, s{T0 + 5}, {L_MAX + 16}
    v_mov_b32 v12, s{T0 + 5}
    ds_read_b32 v10, v12
    """)
    a(f"""
    v_and_b32 v16, 255, v0
    v_lshlrev_b32 v17, 4, v16
    v_max_u32 v18, 1, v16
    v_lshlrev_b32 v18, 4, v18
    v_subrev_u32 v18, 16, v18
    s_cmp_ge_u32 s{S_WAVE}, 4
    s_cselect_b32 s{T0 + 5}, s{S_CH + 1}, s{S_CH}
    s_cselect_b32 s{T0 + 6}, {DATA_CH}, 0
    s_add_u32 s{T0 + 6}, s{T0 + 6}, {R_X}
    s_lshl_b32 s{T0 + 5}, s{T0 + 5}, 12
    s_add_u32 s{T0 + 7}, s{S_BOFF}, {UT}
    s_add_u32 s{T0 + 5}, s{T0 + 5}, s{T0 + 7}
    v_add_u32 v20, s{T0 + 5}, v17
    v_add_u32 v21, s{T0 + 5}, v18
    s_lshl_b32 s{T0 + 5}, s{S_CH + 2}, 12
    s_add_u32 s{T0 + 5}, s{T0 + 5}, s{T0 + 7}
    v_add_u32 v22, s{T0 + 5}, v17
    v_add_u32 v23, s{T0 + 5}, v18
    v_add_u32 v24, s{T0 + 6}, v17
    v_add_u32 v25, {R_X + 2 * DATA_CH}, v17
    v_cmp_eq_u32 {sp(T0 + 10)}, 0, v16
    s_cmp_ge_u32 s{S_WAVE}, 3
    s_cbranch_scc1 L_b_nz
    v_mov_b32 v28, 0
    v_mov_b32 v29, 0
    v_mov_b32 v30, 0
    v_mov_b32 v31, 0
    s_mul_i32 s{T0 + 5}, s{S_WAVE}, {DATA_CH}
    s_add_u32 s{T0 + 5}, s{T0 + 5}, {R_X}
    v_and_b32 v16, 31, v1
    v_lshl_add_u32 v16, v16, 4, s{T0 + 5}
    ds_write_b128 v16, v[28:31] offset:{D_U}
    v_bfe_u32 v16, v1, 1, 2
    v_mul_u32_u24 v17, 3104, v16
    v_cmp_eq_u32 vcc, 3, v16
    v_subrev_u32 v18, 1024, v17
    v_cndmask_b32 v17, v17, v18, vcc
    v_and_b32 v16, 1, v1
    v_lshl_add_u32 v17, v16, 4, v17
    v_add_u32 v17, s{T0 + 5}, v17
    ds_write_b128 v17, v[28:31] offset:{D_U5}
    """)
    a.label("L_b_nz")
    a(f"""
    s_cmp_eq_u32 s{S_WAVE}, 0
    s_cbranch_scc0 L_b_np
    s_and_b32 s{T0 + 5}, s2, 7
    s_lshl_b32 s{T0 + 5}, s{T0 + 5}, 12
    s_add_u32 s{T0 + 5}, s{T0 + 5}, s{S_FOFF}
    s_add_u32 s{T0 + 5}, s{T0 + 5}, {FLAGS + ST_U0 * FSTAGE}
    v_and_b32 v16, 31, v1
    v_lshl_add_u32 v16, v16, 7, s{T0 + 5}
    """)
    poll(a, [16], 18)
    a.label("L_b_np")
    a(f"""
    s_waitcnt vmcnt(0) lgkmcnt(0)
    v_lshlrev_b32 v11, 16, v11
    s_barrier
    """)
    stamp_l(a, 15, 14)
    a(f"""
    global_load_dwordx4 v[76:79], v21, {sp(P_WS)} sc1
    global_load_dwordx4 v[80:83], v20, {sp(P_WS)} sc1
    s_cmp_ge_u32 s{S_WAVE}, 4
    s_cbranch_scc1 L_b_l1
    global_load_dwordx4 v[84:87], v23, {sp(P_WS)} sc1
    global_load_dwordx4 v[88:91], v22, {sp(P_WS)} sc1
    """)
    a.label("L_b_l1")
    a(f"""
    s_max_u32 s{T0 + 5}, s{T0 + 1}, 1
    s_lshl_b32 s{T0 + 5}, s{T0 + 5}, 10
    s_cmp_gt_u32 s{T0 + 5}, 1024
    s_cselect_b32 s{T0 + 5}, s{T0 + 5}, 0
    v_add_u32 v12, s{T0 + 5}, v9
    global_load_dwordx2 v[32:33], v12, {sp(P_WS)} sc1
    global_load_dwordx2 v[34:35], v12, {sp(P_WS)} offset:512 sc1
    s_cbranch_scc1 L_b_l2
    global_load_dwordx2 v[36:37], v12, {sp(P_WS)} offset:1024 sc1
    global_load_dwordx2 v[38:39], v12, {sp(P_WS)} offset:1536 sc1
    """)
    a.label("L_b_l2")
    a("s_waitcnt vmcnt(0)")
    stamp_l(a, 16, 14)
    for r in range(4):
        a(f"v_cndmask_b32 v{76 + r}, v{76 + r}, 0, {sp(T0 + 10)}")
    box_chunk(a, 76, 24)
    a(f"""
    s_cmp_ge_u32 s{S_WAVE}, 4
    s_cbranch_scc1 L_b_go
    """)
    for r in range(4):
        a(f"v_cndmask_b32 v{84 + r}, v{84 + r}, 0, {sp(T0 + 10)}")
    box_chunk(a, 84, 25)
    a.label("L_b_go")
    a(f"""
    s_waitcnt lgkmcnt(0)
    s_barrier
    """)
    stamp_l(a, 17, 14)
    a(f"""
    s_cmp_eq_u32 s{T0 + 1}, 0
    s_cbranch_scc1 L_b_done
    s_cmp_eq_u32 s{T0 + 1}, 2
    s_cbranch_scc1 L_b_p2
    s_cmp_eq_u32 s{T0 + 1}, 3
    s_cbranch_scc1 L_b_p3
    """)
    conv_prog(a, 1)
    a.label("L_b_p2")
    conv_prog(a, 2)
    a.label("L_b_p3")
    conv_prog(a, 3)
    a.label("L_b_done")
    stamp_l(a, 18, 14)


def x2_dma(a):
    a(f"""
    s_lshl_b32 s{T0}, s{S_RB}, 7
    s_add_u32 s{T0}, s{T0}, {X2T - 32}
    """)
    for w in range(1, 8):
        a(f"s_cmp_eq_u32 s{S_WAVE}, {w}")
        a(f"s_cbranch_scc1 L_x2d{w}")
    for w in range(8):
        if w:
            a.label(f"L_x2d{w}")
        for q in range(w, 100, 8):
            z, e = divmod(q, 5)
            a(f"""
            s_xor_b32 s{T0 + 1}, s{S_SK}, {z}
            s_mov_b32 m0, {R_X + z * 5120 + e * 1024}
            s_lshl_b32 s{T0 + 1}, s{T0 + 1}, 17
            s_add_u32 s{T0 + 1}, s{T0 + 1}, s{T0}
            """)
            add64(a, T0 + 2, P_WS, f"s{T0 + 1}")
            a(f"global_load_lds_dwordx4 v{24 + e}, {sp(T0 + 2)} sc1")
        if w < 7:
            a("s_branch L_x2d_done")
    a.label("L_x2d_done")


def rest(a, dump_lds):
    post_gemm(a)
    if STOP in ("o", "o1"):
        a(f"s_cmp_eq_u32 s{S_LAYER}, {0 if STOP == 'o' else 1}")
        a("s_cbranch_scc1 L_fin")
    a2(a)
    a(f"""
    s_cmp_eq_u32 s{S_LAYER}, 0
    s_cbranch_scc0 L_u_nt
    """)
    tap_table_loads(a)
    a.label("L_u_nt")
    a(f"""
    s_waitcnt vmcnt(0)
    s_barrier
    s_cmp_eq_u32 s{S_WAVE}, 0
    s_cbranch_scc0 L_u_np
    s_lshl_b32 s{T0}, s{S_HG}, 5
    s_add_u32 s{T0}, s{T0}, s{S_RB}
    s_lshl_b32 s{T0}, s{T0}, 7
    s_add_u32 s{T0}, s{T0}, s{S_FOFF}
    s_add_u32 s{T0}, s{T0}, {FLAGS + ST_U0 * FSTAGE}
    """)
    publish(a, T0, 2, 4)
    a.label("L_u_np")
    stamp_l(a, 14, 14)
    if STOP in ("u", "u1"):
        a(f"s_cmp_eq_u32 s{S_LAYER}, {0 if STOP == 'u' else 1}")
        a("s_cbranch_scc1 L_fin")
    a(f"""
    s_cmp_eq_u32 s{S_LAYER}, 0
    s_cbranch_scc0 L_u_nb
    """)
    tap_build(a)
    if STOP == "taps":
        dump_lds(a, R_T, 49152, DBG)
        a("s_branch L_fin")
    a.label("L_u_nb")
    conv(a)
    a(f"""
    s_cmp_eq_u32 s{S_LAYER}, 1
    s_cbranch_scc1 L_fin
    s_waitcnt vmcnt(0)
    s_barrier
    s_cmp_eq_u32 s{S_WAVE}, 0
    s_cbranch_scc0 L_x_np
    s_lshl_b32 s{T0}, s2, 7
    s_add_u32 s{T0}, s{T0}, {FLAGS + ST_X0 * FSTAGE}
    """)
    publish(a, T0, 2, 4)
    a.label("L_x_np")
    stamp(a, 19)
    if STOP == "x2":
        a("s_branch L_fin")
    a(f"""
    s_mov_b32 s{S_LAYER}, 1
    s_mov_b32 s{S_FOFF}, {3 * FSTAGE}
    s_mov_b32 s{S_BOFF}, {BUF}
    """)
    g_a1.a1_addresses(a, False)
    slab_offsets(a, 24, 4096)
    a(f"""
    s_cmp_eq_u32 s{S_WAVE}, 0
    s_cbranch_scc0 L_x_go
    v_lshlrev_b32 v32, 7, v1
    v_add_u32 v32, {FLAGS + ST_X0 * FSTAGE}, v32
    v_add_u32 v33, 8192, v32
    v_add_u32 v34, 16384, v32
    v_add_u32 v35, 24576, v32
    """)
    poll(a, [32, 33, 34, 35], 36)
    a.label("L_x_go")
    a("s_barrier")
    stamp(a, 33)
    x2_dma(a)
    g_a1.gemm_all(a, False)
```

```python
from mcommon import *
import struct

fbits = lambda x: struct.unpack("<I", struct.pack("<f", float(x)))[0]

PR = 240
PK = 192
XP = [int(v) for v in os.environ.get('XP', '5,12,20').split(',')]


MAPS = {
    "84": f"""s_and_b32 s{S_SK}, s{T0 + 1}, 3
    s_lshl_b32 s{S_RB}, s{T0}, 2
    s_add_u32 s{S_RB}, s{S_RB}, s{S_SK}
    s_lshr_b32 s{S_HG}, s{T0 + 1}, 2""",
    "48": f"""s_and_b32 s{S_SK}, s{T0 + 1}, 3
    s_lshr_b32 s{S_RB}, s{T0}, 1
    s_lshl_b32 s{S_RB}, s{S_RB}, 3
    s_and_b32 s{S_HG}, s{T0 + 1}, 7
    s_add_u32 s{S_RB}, s{S_RB}, s{S_HG}
    s_and_b32 s{S_HG}, s{T0}, 1
    s_lshl_b32 s{S_HG}, s{S_HG}, 2
    s_lshr_b32 s{T0 + 2}, s{T0 + 1}, 3
    s_add_u32 s{S_HG}, s{S_HG}, s{T0 + 2}""",
}


def entry(a):
    if PROFILE:
        a("s_memrealtime s[100:101]")
    a(f"""
    s_cmp_ge_u32 s2, 256
    s_cbranch_scc1 L_end
    s_load_dwordx16 s[8:23], s[0:1], 0
    s_load_dwordx8 s[24:31], s[0:1], 64
    s_load_dwordx2 s[32:33], s[0:1], 96
    v_lshrrev_b32 v2, 6, v0
    v_and_b32 v1, 63, v0
    v_readfirstlane_b32 s{S_WAVE}, v2
    s_and_b32 s{T0}, s2, 7
    s_lshr_b32 s{T0 + 1}, s2, 3
    {MAPS[os.environ.get("MAP", "48")]}
    s_and_b32 s{S_ODD}, s{T0 + 1}, 1
    s_lshr_b32 s{T0 + 1}, s{T0 + 1}, 1
    s_lshl_b32 s{T0}, s{T0}, 4
    s_add_u32 s{T0}, s{T0}, s{T0 + 1}
    s_mul_i32 s{T0}, s{T0}, 5
    s_mul_i32 s{T0 + 1}, s{S_ODD}, 3
    s_add_u32 s{S_CH}, s{T0}, s{T0 + 1}
    s_add_u32 s{S_CH + 1}, s{S_CH}, 1
    s_add_u32 s{S_CH + 2}, s{T0}, 2
    s_mov_b32 s{S_LAYER}, 0
    s_mov_b32 s{S_FOFF}, 0
    s_mov_b32 s{S_BOFF}, 0
    """)


UB = 4608
RS_ = 288


def ssm_unit(a, s_blk, hooks={}):
    PW, T, CV, BF, ACC = 4, 16, 52, 68, 84
    W1, W8, W128, W256, W512, W1024 = (PW + 2 * i for i in range(6))

    def hook(k):
        if k in hooks:
            hooks[k]()
            a(f"s_mov_b32 m0, s{s_blk}")

    a(f"""
    v_lshlrev_b32 v{CV}, 16, v{PR}
    v_lshlrev_b32 v{CV + 4}, 16, v{PR + 4}
    v_mul_f32 v{CV}, {LOG2E}, v{CV}
    v_mul_f32 v{CV + 4}, {LOG2E}, v{CV + 4}
    v_exp_f32 v{CV}, v{CV}
    v_exp_f32 v{CV + 4}, v{CV + 4}
    v_lshlrev_b32 v{CV + 1}, 16, v{PR + 1}
    v_lshlrev_b32 v{CV + 2}, 16, v{PR + 2}
    v_lshlrev_b32 v{CV + 3}, 16, v{PR + 3}
    v_cvt_pk_bf16_f32 v{CV}, v{CV}, v{CV + 4}
    v_and_b32 v3, 15, v1
    v_mul_u32_u24 v3, {RS_}, v3
    v_and_b32 v2, 0x30, v1
    v_add3_u32 v3, v3, v2, s{s_blk}
    s_mov_b32 m0, s{s_blk}
    v_and_b32 v{CV + 4}, 0xffff0000, v{CV}
    v_lshlrev_b32 v{CV}, 16, v{CV}
    v_mul_f32 v{CV}, v{CV}, v{CV + 4}
    v_mul_f32 v{CV + 1}, v{CV + 1}, v{CV + 4}
    v_mul_f32 v{ACC}, v{CV + 2}, v{CV + 4}
    v_mul_f32 v{ACC + 1}, v{CV + 3}, v{CV + 4}
    v_mul_f32 v{CV}, {LOG2E ^ 0x80000000}, v{CV}
    v_mul_f32 v{CV + 1}, {INV2PI}, v{CV + 1}
    v_mul_f32 v{ACC}, 0x44000000, v{ACC}
    v_mul_f32 v{ACC + 1}, 0x44000000, v{ACC + 1}
    """)
    POW = [1, 8, 128, 256, 512, 1024]
    M, PH = CV + 2, CV + 8
    for q, pw in enumerate(POW):
        a(f"v_mul_f32 v{M + q}, {fbits(pw)}, v{CV}")
        a(f"v_mul_f32 v{PH + q}, {fbits(pw)}, v{CV + 1}")
    for q in range(6):
        a(f"v_exp_f32 v{M + q}, v{M + q}")
        a(f"v_fract_f32 v{PH + q}, v{PH + q}")
    for q in range(6):
        a(f"v_cos_f32 v{PW + 2 * q}, v{PH + q}")
        a(f"v_sin_f32 v{PW + 2 * q + 1}, v{PH + q}")
    for q in range(6):
        a(f"v_mul_f32 v{PW + 2 * q}, v{PW + 2 * q}, v{M + q}")
        a(f"v_mul_f32 v{PW + 2 * q + 1}, v{PW + 2 * q + 1}, v{M + q}")
    hook(0)

    def cmul(d, z, w):
        return [f"v_pk_mul_f32 v[{d}:{d + 1}], v[{z}:{z + 1}], v[{w}:{w + 1}] op_sel:[0,0] op_sel_hi:[1,0]",
                f"v_pk_fma_f32 v[{d}:{d + 1}], v[{z}:{z + 1}], v[{w}:{w + 1}], v[{d}:{d + 1}] op_sel:[1,1,0] op_sel_hi:[0,1,1] neg_lo:[1,0,0]"]

    def par(seqs):
        for i in range(2):
            for s in seqs:
                a(s[i])

    def table(regs, neg_im):
        n = "-" if neg_im else ""
        for i, r in enumerate(regs):
            a(f"v_cvt_pk_f16_f32 v{CV + i}, v{r}, {n}v{r + 1}")
        for i, r in enumerate(regs):
            a(f"ds_write_addtid_b32 v{CV + i} offset:{RS_ * i}")

    def frags(dst):
        a("s_waitcnt lgkmcnt(0)")
        for ks in range(4):
            a(f"ds_read_b128 {vq(dst + 4 * ks)}, v3 offset:{64 * ks}")

    E = lambda j: T + 2 * j
    a(f"""
    v_mov_b32 v{E(0)}, 1.0
    v_mov_b32 v{E(0) + 1}, 0
    v_mov_b32 v{E(1)}, v{W8}
    v_mov_b32 v{E(1) + 1}, v{W8 + 1}
    """)
    V2, V4 = T + 32, T + 34
    par([cmul(E(2), W8, W8), cmul(V2, W1, W1)])
    par([cmul(E(3), E(2), W8), cmul(E(4), E(2), E(2)), cmul(V4, V2, V2)])
    par([cmul(E(j), E(j - 4), E(4)) for j in (5, 6, 7, 8)])
    par([cmul(E(j), E(j - 4), E(4)) for j in (9, 10, 11, 12)])
    par([cmul(E(j), E(j - 4), E(4)) for j in (13, 14, 15)])
    table([E(j) for j in range(16)], True)
    X = lambda i: T + 2 * i
    a(f"v_mov_b32 v{X(0)}, v{ACC}")
    a(f"v_mov_b32 v{X(0) + 1}, v{ACC + 1}")
    par([cmul(X(1), X(0), W1), cmul(X(2), X(0), V2), cmul(X(4), X(0), V4), cmul(X(8), X(0), W128)])
    frags(BF)
    par([cmul(X(3), X(1), V2), cmul(X(5), X(1), V4), cmul(X(6), X(2), V4), cmul(X(9), X(1), W128), cmul(X(10), X(2), W128), cmul(X(12), X(4), W128)])
    par([cmul(X(7), X(3), V4), cmul(X(11), X(3), W128), cmul(X(13), X(5), W128), cmul(X(14), X(6), W128)])
    par([cmul(X(15), X(7), W128)])
    hook(1)
    a("s_waitcnt lgkmcnt(0)")
    table([X(i) for i in range(16)], False)

    def mm(tau):
        for ks in range(4):
            c = vq(ACC + 4 * tau)
            a(f"v_mfma_f32_16x16x32_f16 {c}, {vq(CV + 4 * ks)}, {vq(BF + 4 * ks)}, {c if ks else 0}")

    src1 = [0, 2, 4, 6, 8, 10, 12, 14]
    dst1 = [1, 3, 5, 7, 9, 11, 13, 15]
    par([cmul(X(d), X(s), W256) for s, d in zip(src1, dst1)])
    frags(CV)
    par([cmul(X(d), X(s), W512) for s, d in zip([0, 4, 8, 12], [2, 6, 10, 14])])
    par([cmul(X(d), X(s), W256) for s, d in zip([2, 6, 10, 14], [4, 12, 16, 17])])
    hook(2)
    a("s_waitcnt lgkmcnt(0)")
    mm(0)
    table([X(i) for i in dst1 + [2, 6, 10, 14, 4, 12, 16, 17]], False)
    par([cmul(X(1), X(0), W1024), cmul(X(3), X(8), W1024)])
    frags(CV)
    par([cmul(X(5), X(1), W256), cmul(X(7), X(3), W256), cmul(X(9), X(1), W512), cmul(X(11), X(3), W512), cmul(X(2), X(1), W1024)])
    par([cmul(X(13), X(9), W256), cmul(X(15), X(11), W256)])
    hook(3)
    a("s_waitcnt lgkmcnt(0)")
    mm(1)
    table([X(i) for i in (1, 3, 5, 7, 9, 11, 13, 15, 2)], False)
    frags(CV)
    a(f"""
    v_lshl_add_u32 v2, v1, 4, s{s_blk}
    v_mov_b32 v4, 0
    s_waitcnt lgkmcnt(0)
    """)
    mm(2)
    a(f"""
    ds_write_b128 v2, {vq(ACC)}
    ds_write_b128 v2, {vq(ACC + 4)} offset:1024
    ds_write_addtid_b32 v4 offset:3072
    ds_write_b128 v2, {vq(ACC + 8)} offset:2048
    """)


COLB = [0, 2, 4, 40, 41, 43, 80, 82, 84]
TILE = [0, 2, 6, 7, 4, 8, 10, 12, 14]
C_COL = sum(v << (7 * i) for i, v in enumerate(COLB))
C_TIL = sum(v << (4 * i) for i, v in enumerate(TILE))


def pack_decode(a, i):
    SG, RO, A = T0 + 10 + i, T0 + 8 + i, 24 + 4 * i
    a(f"""
    s_add_u32 s{T0 + 7}, s{T0 + 3}, {i}
    s_mul_i32 s{T0 + 4}, s{T0 + 7}, 46604
    s_lshr_b32 s{T0 + 4}, s{T0 + 4}, 23
    s_mul_i32 s{T0 + 5}, s{T0 + 4}, 180
    s_sub_u32 s{T0 + 5}, s{T0 + 7}, s{T0 + 5}
    s_mul_i32 s{T0 + 6}, s{T0 + 5}, 57
    s_lshr_b32 s{T0 + 6}, s{T0 + 6}, 9
    s_mul_i32 s{T0 + 7}, s{T0 + 6}, 9
    s_sub_u32 s{T0 + 7}, s{T0 + 5}, s{T0 + 7}
    s_mov_b32 s{T0 + 12}, {C_COL & 0xffffffff}
    s_mov_b32 s{T0 + 13}, {C_COL >> 32}
    s_mul_i32 s{T0 + 5}, s{T0 + 7}, 7
    s_lshr_b64 {sp(T0 + 12)}, {sp(T0 + 12)}, s{T0 + 5}
    s_and_b32 s{T0 + 5}, s{T0 + 12}, 127
    s_lshl_b32 s{T0 + 5}, s{T0 + 5}, 5
    s_mul_i32 s{T0 + 12}, s{T0 + 4}, 160
    s_add_u32 s{T0 + 5}, s{T0 + 5}, s{T0 + 12}
    s_mul_i32 s{T0 + 12}, s{T0 + 6}, {32 * 3840}
    s_add_u32 s{RO}, s{T0 + 5}, s{T0 + 12}
    s_lshr_b32 s{SG}, 0x10c, s{T0 + 7}
    s_and_b32 s{SG}, s{SG}, 1
    s_cselect_b32 s{T0 + 5}, 1, 2
    s_cselect_b32 s{T0 + 12}, 14, 15
    v_and_b32 v{A}, s{T0 + 12}, v4
    v_lshlrev_b32 v{A}, s{T0 + 5}, v{A}
    v_add_u32 v{A}, v{A}, v5
    v_add_u32 v{A + 1}, {2 * 3840}, v{A}
    v_add_u32 v{A + 2}, {4 * 3840}, v{A}
    v_add_u32 v{A + 3}, {6 * 3840}, v{A}
    s_mov_b32 s{T0 + 12}, {C_TIL & 0xffffffff}
    s_mov_b32 s{T0 + 13}, {C_TIL >> 32}
    s_lshl_b32 s{T0 + 5}, s{T0 + 7}, 2
    s_lshr_b64 {sp(T0 + 12)}, {sp(T0 + 12)}, s{T0 + 5}
    s_and_b32 s{T0 + 5}, s{T0 + 12}, 15
    s_mul_i32 s{T0 + 12}, s{T0 + 4}, 15
    s_add_u32 s{T0 + 5}, s{T0 + 5}, s{T0 + 12}
    s_mul_i32 s{T0 + 5}, s{T0 + 5}, 20
    s_add_u32 s{T0 + 5}, s{T0 + 5}, s{T0 + 6}
    s_lshl_b32 s{T0 + 5}, s{T0 + 5}, 10
    s_add_u32 s{T0 + 5}, s{T0 + 5}, {WP}
    v_lshl_add_u32 v{10 + 2 * i}, v1, 4, s{T0 + 5}
    v_add_u32 v{11 + 2 * i}, 20480, v{10 + 2 * i}
    v_and_b32 v{14 + i}, s{SG}, v1
    v_mul_u32_u24 v{14 + i}, 0x020202, v{14 + i}
    v_lshl_or_b32 v{14 + i}, v{14 + i}, 8, v{14 + i}
    v_add_u32 v{14 + i}, 0x05040100, v{14 + i}
    """)


def pack_loads(a, i):
    R, A = PK + 16 * i, 24 + 4 * i
    add64(a, T0 + 12, P_WQ, f"s{T0 + 8 + i}")
    for e in range(8):
        a(f"global_load_dword v{R + e}, v{A + e // 2}, {sp(T0 + 12)} offset:{3840 * (e % 2)}")


def param_addr(a, s_ch, s_third):
    a(f"""
    s_mul_i32 s{T0 + 12}, s{s_ch}, 384
    s_lshl_b32 s{T0 + 13}, s{s_third}, 7
    s_add_u32 s{T0 + 12}, s{T0 + 12}, s{T0 + 13}
    v_lshl_add_u32 v2, v1, 1, s{T0 + 12}
    s_lshl_b32 s{T0 + 13}, s{s_ch}, 1
    v_mov_b32 v3, s{T0 + 13}
    """)


def param_loads(a):
    a(f"""
    global_load_ushort v{PR}, v2, {sp(P_LA)}
    global_load_ushort v{PR + 4}, v3, {sp(P_LD)}
    global_load_ushort v{PR + 1}, v2, {sp(P_AI)}
    global_load_ushort v{PR + 2}, v2, {sp(P_CR)}
    global_load_ushort v{PR + 3}, v2, {sp(P_CI)}
    """)


XB = 246


def x_dma(a, i0, i1):
    Ld = uid("xd")
    a(f"""
    s_sub_u32 s{T0 + 6}, s{S_WAVE}, 3
    s_lshl_b32 s{T0 + 6}, s{T0 + 6}, 10
    s_mul_i32 s{T0 + 7}, s{S_RB}, {16 * 5120}
    s_max_u32 s{T0 + 5}, s{T0 + 7}, {4 * 5120}
    s_and_b32 s{T0 + 10}, s{S_HG}, 3
    """)
    for h in range(1, 4):
        a(f"s_cmp_eq_u32 s{T0 + 10}, {h}")
        a(f"s_cbranch_scc1 {Ld}_{h}")
    for h in range(4):
        if h:
            a.label(f"{Ld}_{h}")
        prev = None
        for i in range(i0, i1):
            z = (i + 5 * h) % 20
            a(f"s_add_u32 m0, s{T0 + 6}, {R_X + z * 5120}")
            if prev is None or z != prev + 1 or z == 4:
                a(f"s_add_u32 s{T0 + 10}, s{T0 + 5 if z < 4 else T0 + 7}, {(z - 4) * 5120}")
                add64(a, T0 + 8, P_X, f"s{T0 + 10}")
            else:
                add64(a, T0 + 8, T0 + 8, 5120)
            a(f"global_load_lds_dwordx4 v{XB + z % 4}, {sp(T0 + 8)}")
            prev = z
        if h < 3:
            a(f"s_branch {Ld}")
    a.label(Ld)


def start(a, pre_w):
    entry(a)
    a(f"""
    s_mul_i32 s{T0}, s{S_WAVE}, 11
    s_lshr_b32 s{T0}, s{T0}, 5
    s_mul_i32 s{T0 + 1}, s{T0}, 3
    s_sub_u32 s{T0 + 1}, s{S_WAVE}, s{T0 + 1}
    s_cmp_eq_u32 s{T0}, 1
    s_cselect_b32 s{T0 + 2}, s{S_CH + 1}, s{S_CH}
    s_cmp_eq_u32 s{T0}, 2
    s_cselect_b32 s{T0 + 2}, s{S_CH + 2}, s{T0 + 2}
    v_mov_b32 v16, 0
    v_mov_b32 v17, 0
    v_mov_b32 v18, 0
    v_mov_b32 v19, 0
    """)
    param_addr(a, T0 + 2, T0 + 1)
    a(f"""
    s_cmp_ge_u32 s{S_WAVE}, 3
    s_cbranch_scc1 L_st_x
    s_min_u32 s{T0 + 3}, s2, 239
    s_mul_i32 s{T0 + 3}, s{T0 + 3}, 6
    s_lshl_b32 s{T0 + 4}, s{S_WAVE}, 1
    s_add_u32 s{T0 + 3}, s{T0 + 3}, s{T0 + 4}
    v_and_b32 v4, 15, v1
    v_lshrrev_b32 v5, 4, v1
    v_mul_u32_u24 v5, {8 * 3840}, v5
    v_mov_b32 v{XB}, 0
    v_mov_b32 v{XB + 1}, 0
    v_mov_b32 v{XB + 2}, 0
    v_mov_b32 v{XB + 3}, 0
    """)
    pack_decode(a, 0)
    pack_decode(a, 1)
    a(f"""
    s_lshl_b32 s{T0 + 4}, s{S_RB}, 3
    s_add_u32 s{T0 + 4}, s{T0 + 4}, s{S_HG}
    s_lshl_b32 s{T0 + 4}, s{T0 + 4}, 10
    s_add_u32 s{T0 + 4}, s{T0 + 4}, {STATS}
    v_lshl_add_u32 v6, v1, 4, s{T0 + 4}
    v_add_u32 v7, {STATS_L}, v6
    v_and_b32 v8, 3, v1
    v_lshlrev_b32 v8, 4, v8
    v_add_u32 v8, {L_CTR}, v8
    v_mov_b32 v9, {L_MAX}
    ds_write_b128 v8, v[16:19]
    ds_write_b128 v9, v[16:19]
    s_waitcnt lgkmcnt(0)
    """)
    stamp_init(a)
    stamp(a, 0)
    a(f"""
    s_cmp_ge_u32 s2, 240
    s_cbranch_scc1 L_st_nopack
    """)
    pack_loads(a, 0)
    pack_loads(a, 1)
    a.label("L_st_nopack")
    param_loads(a)
    a(f"""
    global_load_dwordx2 v[20:21], v16, {sp(P_WS)} sc1
    s_cmp_eq_u32 s{S_WAVE}, 2
    s_cbranch_scc0 L_st_b0
    global_store_dwordx4 v6, v[16:19], {sp(P_WS)} sc1
    global_store_dwordx4 v7, v[16:19], {sp(P_WS)} sc1
    s_cmp_eq_u32 s2, 255
    s_cbranch_scc0 L_st_b0
    v_and_b32 v6, 1, v1
    v_lshlrev_b32 v6, 4, v6
    v_add_u32 v6, {X2T - 32}, v6
    s_mov_b64 exec, 3
    global_store_dwordx4 v6, v[16:19], {sp(P_WS)} sc1
    s_mov_b64 exec, -1
    """)
    a.label("L_st_b0")
    a(f"""
    s_barrier
    s_waitcnt vmcnt(0)
    s_cmp_ge_u32 s2, 240
    s_cbranch_scc1 L_st_unit
    s_mov_b32 s{T0 + 8}, 0x07060302
    """)
    for i in range(2):
        R = PK + 16 * i
        for d in range(4):
            a(f"v_perm_b32 v{R + 8 + d}, v{R + 2 * d + 1}, v{R + 2 * d}, v{14 + i}")
        a(f"global_store_dwordx4 v{10 + 2 * i}, {vq(R + 8)}, {sp(P_WS)} sc1")
    for i in range(2):
        R = PK + 16 * i
        a(f"""
        s_cmp_eq_u32 s{T0 + 10 + i}, 1
        s_cbranch_scc1 L_st_sg{i}
        """)
        for d in range(4):
            a(f"v_perm_b32 v{R + 12 + d}, v{R + 2 * d + 1}, v{R + 2 * d}, s{T0 + 8}")
        a(f"global_store_dwordx4 v{11 + 2 * i}, {vq(R + 12)}, {sp(P_WS)} sc1")
        a.label(f"L_st_sg{i}")
    a("s_branch L_st_unit")
    a.label("L_st_x")
    a(f"""
    s_lshl_b32 s{T0 + 4}, s{S_WAVE}, 6
    v_add_u32 v6, s{T0 + 4}, v1
    v_subrev_u32 v6, 192, v6
    v_mul_u32_u24 v7, 205, v6
    v_lshrrev_b32 v7, 14, v7
    v_mul_u32_u24 v8, 80, v7
    v_sub_u32 v8, v6, v8
    v_xor_b32 v8, v8, v7
    v_lshlrev_b32 v8, 4, v8
    v_mul_u32_u24 v7, 1280, v7
    v_add_u32 v7, v7, v8
    s_lshl_b32 s{T0 + 4}, s{S_SK}, 6
    v_xor_b32 v{XB}, s{T0 + 4}, v7
    v_xor_b32 v{XB + 1}, 64, v{XB}
    v_xor_b32 v{XB + 2}, 128, v{XB}
    v_xor_b32 v{XB + 3}, 192, v{XB}
    s_waitcnt lgkmcnt(0)
    """)
    stamp_init(a)
    stamp(a, 0)
    param_loads(a)
    a(f"""
    global_load_dwordx2 v[20:21], v16, {sp(P_WS)} sc1
    s_barrier
    """)
    x_dma(a, 0, XP[0])
    a(f"s_waitcnt vmcnt({XP[0]})")
    a.label("L_st_unit")
    a(f"""
    v_readfirstlane_b32 s{TAG}, v20
    v_readfirstlane_b32 s{TAG + 1}, v21
    s_add_u32 s{TAG}, s{TAG}, 1
    s_addc_u32 s{TAG + 1}, s{TAG + 1}, 0
    """)
    stamp(a, 1)

    def xpart(k, extra=None):
        def f():
            L = uid("xs")
            a(f"""
            s_cmp_lt_u32 s{S_WAVE}, 3
            s_cbranch_scc1 {L}
            """)
            x_dma(a, XP[k - 1], XP[k])
            if extra:
                extra(L)
            a.label(L)
        return f

    def flag():
        a(f"""
        s_cmp_ge_u32 s{S_WAVE}, 3
        s_cbranch_scc1 L_st_mid
        """)
        stamp(a, 30)
        a("s_waitcnt vmcnt(0)")
        stamp(a, 31)
        lds_last(a, L_CTR, 3, PK, PK + 2)
        a(f"""
        s_cbranch_scc0 L_st_mid
        s_lshl_b32 s{T0 + 8}, s2, 7
        s_add_u32 s{T0 + 8}, s{T0 + 8}, {FLAGS + ST_W * FSTAGE}
        """)
        publish(a, T0 + 8, PK, PK + 2)
        a.label("L_st_mid")

    def warm(L):
        a(f"""
        s_lshr_b32 s{T0 + 5}, s2, 3
        s_cmp_eq_u32 s{S_WAVE}, 7
        s_cbranch_scc1 L_st_pc
        s_cmp_eq_u32 s{S_WAVE}, 6
        s_cbranch_scc0 {L}
        s_mul_i32 s{T0 + 5}, s{T0 + 5}, 25600
        v_min_u32 v{PK}, 49, v1
        v_lshlrev_b32 v{PK}, 7, v{PK}
        v_add_u32 v{PK}, s{T0 + 5}, v{PK}
        v_add_u32 v{PK + 1}, 6400, v{PK}
        v_add_u32 v{PK + 2}, 12800, v{PK}
        v_add_u32 v{PK + 3}, 19200, v{PK}
        global_load_dword v{PK}, v{PK}, {sp(P_WO)}
        global_load_dword v{PK + 1}, v{PK + 1}, {sp(P_WO)}
        global_load_dword v{PK + 2}, v{PK + 2}, {sp(P_WO)}
        global_load_dword v{PK + 3}, v{PK + 3}, {sp(P_WO)}
        s_branch {L}
        """)
        a.label("L_st_pc")
        a(f"s_getpc_b64 {sp(T0 + 8)}")
        a.label("L_pcref")
        a(f"""
        s_lshl_b32 s{T0 + 5}, s{T0 + 5}, 5
        v_and_b32 v{PK}, 31, v1
        v_add_u32 v{PK}, s{T0 + 5}, v{PK}
        v_lshlrev_b32 v{PK}, 7, v{PK}
        v_min_u32 v{PK}, L_code_end-L_pcref-4, v{PK}
        global_load_dword v{PK}, v{PK}, {sp(T0 + 8)}
        """)

    def warmup():
        warm("L_st_wu")
        a.label("L_st_wu")

    a(f"""
    s_mul_i32 s{T0 + 4}, s{S_WAVE}, {UB}
    s_add_u32 s{T0 + 4}, s{T0 + 4}, {R_T}
    """)
    ssm_unit(a, T0 + 4, {0: xpart(1), 1: flag, 2: xpart(2), 3: warmup})
    stamp(a, 2)
    a(f"""
    s_cmp_eq_u32 s{S_WAVE}, 0
    s_cbranch_scc0 L_st_np
    s_mul_i32 s{T0 + 4}, s{S_HG}, 30
    v_min_u32 v2, 29, v1
    v_add_u32 v2, s{T0 + 4}, v2
    v_lshlrev_b32 v2, 7, v2
    v_add_u32 v2, {FLAGS + ST_W * FSTAGE}, v2
    """)
    poll(a, [2], 4)
    a(f"""
    v_mov_b32 v2, {L_CTR + 4}
    v_mov_b32 v3, 1
    ds_write_b32 v2, v3
    """)
    a.label("L_st_np")
    pre_w()
    a(f"""
    s_waitcnt vmcnt(0)
    s_sub_u32 s{T0 + 4}, s{S_WAVE}, 3
    s_cmp_lt_u32 s{T0 + 4}, 2
    s_cbranch_scc0 L_st_w
    s_lshl_b32 s{T0 + 4}, s{T0 + 4}, 10
    s_add_u32 s{T0 + 4}, s{T0 + 4}, {R_X}
    v_lshl_add_u32 v24, v1, 4, s{T0 + 4}
    v_min_u32 v24, {R_X + 1264}, v24
    ds_write_b128 v24, v[10:13]
    """)
    a.label("L_st_w")
    stamp(a, 5)
    lds_spin(a, L_CTR + 4, 1, 24, 25)
    stamp(a, 3)
```

```python
EPOCH = 0x0
FLAGS = 0x1000
FSTAGE = 32768
ST_W, ST_O0, ST_U0, ST_X0, ST_O1, ST_U1, ST_X1 = range(7)
STATS = 0x40000
STATS_L = 0x4000
WP = 0x100000
BUF = 0x280000
OB = 0x400000
X1T = 0x900000
WOP = 0xE00000
X2T = 0x1300000
DBG = 0x1900000
PROF = 0x2000000

TS8 = 100
T_NEAR = 0
T_G9 = 73
T_G7 = 84
T4_BASE = 8 * TS8 * 16
TS4 = 36
T_G5 = 0
T_G3 = 15
TAP_CH = T4_BASE + 4 * TS4 * 16

D_U = 0
D_U5 = 4608
D_U3 = D_U5 + 3104
D_U9 = D_U3 + 3104
D_U7 = D_U9 + 2080
DATA_CH = D_U7 + 2080


def conv_steps(j):
    st = []
    for p in range(8 if j == 0 else 16 if j == 1 else 17):
        st.append(("near", p, 8 * j - p))
    if j >= 4:
        st.append(("near", 17, 8 * j - 32))
    for e in (2, 3, 4):
        if j - e >= 0:
            st.append(("g5", e, j - e))
            st.append(("g3", e, j - e))
    if j >= 4:
        for sg in range(2):
            if sg == 0 or j >= 6:
                st.append(("g9", 16 * j - 32 * sg, sg))
                st.append(("g7", 16 * j - 32 * sg, sg))
    return st
```

```python
import os
from asmlib2 import Asm
from layout import *

PROFILE = bool(int(os.environ.get("PROFILE", "0")))
STOP = os.environ.get("STOP", "")

S_WAVE, S_HG, S_RB, S_SK, S_LAYER = 3, 4, 5, 6, 7
P_X, P_WQ, P_WO = 8, 10, 12
P_LA, P_AI, P_CR, P_CI, P_LD, P_DS, P_OUT, P_DBG, P_WS = 16, 18, 20, 22, 24, 26, 28, 30, 32
TAG = 34
S_ODD = 36
S_CH = 37
S_FOFF = 40
S_BOFF = 41
T0 = 42
EXS = 58
STP = 60
SPIN_LIMIT = 200000

R_T = 0
R_M = R_T + 3 * TAP_CH
R_X = 61440
L_CTR = R_M
L_ST = R_M + 64
L_CS = L_ST + 640
L_MAX = L_CS + 960
LDS_BYTES = 163840
QS = 496

LOG2E = 0x3fb8aa3b
INV2PI = 0x3e22f983
SCALE = 0x3e64f92e
WREG = 96


def sp(i):
    return f"s[{i}:{i + 1}]"


def vq(i, n=4):
    return f"v[{i}:{i + n - 1}]"


def add64(a, d, s, off):
    a(f"s_add_u32 s{d}, s{s}, {off}")
    a(f"s_addc_u32 s{d + 1}, s{s + 1}, 0")


NSTAMP = [0]


def stamp(a, i):
    if PROFILE:
        assert i < 36
        a(f"s_memtime s[{STP}:{STP + 1}]")
        a("s_waitcnt lgkmcnt(0)")
        a(f"s_mov_b32 s{62 + i}, s{STP}")


def stamp_l(a, i, stride):
    if PROFILE:
        a(f"s_memtime s[{STP}:{STP + 1}]")
        a("s_waitcnt lgkmcnt(0)")
        a(f"s_cmp_eq_u32 s{S_LAYER}, 0")
        a(f"s_cselect_b32 s{62 + i}, s{STP}, s{62 + i}")
        a(f"s_cselect_b32 s{62 + i + stride}, s{62 + i + stride}, s{STP}")


def stamp_init(a):
    if PROFILE:
        for i in range(36):
            a(f"s_mov_b32 s{62 + i}, 0")
        a("s_memrealtime s[98:99]")
        a("s_waitcnt lgkmcnt(0)")


def stamp_flush(a):
    if not PROFILE:
        return
    a(f"""
    s_mov_b64 exec, -1
    s_lshl_b32 s{T0}, s2, 3
    s_add_u32 s{T0}, s{T0}, s{S_WAVE}
    s_lshl_b32 s{T0}, s{T0}, 8
    s_add_u32 s{T0}, s{T0}, {PROF}
    """)
    add64(a, T0 + 2, P_WS, f"s{T0}")
    a(f"""
    v_mov_b32 v0, 0
    s_memrealtime s[{STP}:{STP + 1}]
    s_waitcnt lgkmcnt(0)
    v_mov_b32 v1, s100
    global_store_dword v0, v1, {sp(T0 + 2)} offset:244
    v_mov_b32 v1, s98
    global_store_dword v0, v1, {sp(T0 + 2)} offset:248
    v_mov_b32 v1, s{STP}
    global_store_dword v0, v1, {sp(T0 + 2)} offset:252
    """)
    for i in range(36):
        a(f"v_mov_b32 v1, s{62 + i}")
        a(f"global_store_dword v0, v1, {sp(T0 + 2)} offset:{4 * i}")


_uid = [0]


def uid(p):
    _uid[0] += 1
    return f"L_{p}{_uid[0]}"


def publish(a, off_expr_sgpr, va, vd):
    a(f"""
    v_mov_b32 v{va}, s{off_expr_sgpr}
    v_mov_b32 v{vd}, s{TAG}
    v_mov_b32 v{vd + 1}, s{TAG + 1}
    s_mov_b64 exec, 1
    global_store_dwordx2 v{va}, v[{vd}:{vd + 1}], {sp(P_WS)} sc1
    s_mov_b64 exec, -1
    """)


def get_tag(a, va, vd):
    L = uid("tag")
    a(f"""
    v_mov_b32 v{va}, 0
    s_mov_b32 s{T0 + 15}, 0
    """)
    a.label(L)
    a(f"""
    global_load_dwordx2 v[{vd}:{vd + 1}], v{va}, {sp(P_DBG)} sc1
    s_add_u32 s{T0 + 15}, s{T0 + 15}, 1
    s_waitcnt vmcnt(0)
    v_readfirstlane_b32 s{TAG}, v{vd}
    v_readfirstlane_b32 s{TAG + 1}, v{vd + 1}
    s_cmp_gt_u32 s{T0 + 15}, {SPIN_LIMIT}
    s_cbranch_scc1 L_end
    s_cmp_eq_u64 {sp(TAG)}, 0
    s_cbranch_scc1 {L}
    """)


def poll(a, vaddrs, vd):
    L = uid("poll")
    a(f"s_mov_b32 s{T0 + 15}, 0")
    a.label(L)
    for i, va in enumerate(vaddrs):
        a(f"global_load_dwordx2 v[{vd + 2 * i}:{vd + 2 * i + 1}], v{va}, {sp(P_WS)} sc1")
    a(f"s_add_u32 s{T0 + 15}, s{T0 + 15}, 1")
    a("s_waitcnt vmcnt(0)")
    for i in range(len(vaddrs)):
        if i == 0:
            a(f"v_cmp_ne_u64 vcc, {sp(TAG)}, v[{vd}:{vd + 1}]")
        else:
            a(f"v_cmp_ne_u64 {sp(T0 + 12)}, {sp(TAG)}, v[{vd + 2 * i}:{vd + 2 * i + 1}]")
            a(f"s_or_b64 vcc, vcc, {sp(T0 + 12)}")
    a(f"""
    s_cmp_gt_u32 s{T0 + 15}, {SPIN_LIMIT}
    s_cbranch_scc1 L_end
    s_cbranch_vccnz {L}
    """)


def lds_last(a, ctr_off, total, va, vd):
    a(f"""
    v_mov_b32 v{va}, {ctr_off}
    v_mov_b32 v{vd}, 1
    s_mov_b64 exec, 1
    ds_add_rtn_u32 v{vd}, v{va}, v{vd}
    s_waitcnt lgkmcnt(0)
    s_mov_b64 exec, -1
    v_readfirstlane_b32 s{T0 + 14}, v{vd}
    s_cmp_eq_u32 s{T0 + 14}, {total - 1}
    """)


def lds_spin(a, off, want, va, vd):
    L = uid("sp")
    a(f"""
    v_mov_b32 v{va}, {off}
    s_mov_b32 s{T0 + 15}, 0
    """)
    a.label(L)
    a(f"""
    ds_read_b32 v{vd}, v{va}
    s_add_u32 s{T0 + 15}, s{T0 + 15}, 1
    s_waitcnt lgkmcnt(0)
    v_readfirstlane_b32 s{T0 + 14}, v{vd}
    s_cmp_gt_u32 s{T0 + 15}, {SPIN_LIMIT * 10}
    s_cbranch_scc1 L_end
    s_cmp_lt_u32 s{T0 + 14}, {want}
    s_cbranch_scc1 {L}
    """)
```

```python
import numpy as np
from layout import *

def bf16r(l):
    x = np.float32(l).view(np.uint32)
    x = (x + 0x7fff + ((x >> 16) & 1)) & 0xffff0000
    return int(np.uint32(x).view(np.float32))

def tap_sources():
    img = -np.ones(TAP_CH // 2, dtype=np.int64)
    def near(l):
        if 0 <= l <= 514: return bf16r(l)
        if l in (547, 548): return 1024
        return -1
    g9 = lambda m: 16 * m if 65 <= m <= 128 else -1
    g7 = lambda m: 16 * m + 8 if 64 <= m <= 127 else -1
    g5 = lambda m: 8 * m if 65 <= m <= 128 else -1
    g3 = lambda m: 8 * m + 4 if 64 <= m <= 127 else -1
    for sg in range(8):
        for sl in range(73):
            for e in range(8):
                y = 8 * (sl + 1) + e
                img[(sg * TS8 + T_NEAR + sl) * 8 + e] = near(576 - y + sg)
        for sl in range(11):
            for e in range(8):
                y = 8 * (sl + 1) + e
                img[(sg * TS8 + T_G9 + sl) * 8 + e] = g9(129 - y + sg)
                img[(sg * TS8 + T_G7 + sl) * 8 + e] = g7(128 - y + sg)
    for q in range(4):
        for sl in range(15):
            for e in range(8):
                y = 8 * (sl + 1) + e
                img[T4_BASE // 2 + (q * TS4 + T_G5 + sl) * 8 + e] = g5(162 - y + 2 * q)
                img[T4_BASE // 2 + (q * TS4 + T_G3 + sl) * 8 + e] = g3(161 - y + 2 * q)
    return img

def tap_addr(kind, ti, lane):
    m, g = lane & 15, lane >> 4
    if kind == "near":
        y0 = 576 - 32 * ti - 16 * (g >> 1) + 8 * (g & 1) - 8 * (m >> 3)
        return ((m & 7) * TS8 + T_NEAR + y0 // 8 - 1) * 16
    if kind in ("g9", "g7"):
        y0 = 128 - ti - 8 * (m >> 3) + 8 * g
        return ((m & 7) * TS8 + (T_G9 if kind == "g9" else T_G7) + y0 // 8 - 1) * 16
    y0 = 160 - 32 * ti - 8 * (m >> 2) + 8 * g
    return T4_BASE + ((m & 3) * TS4 + (T_G5 if kind == "g5" else T_G3) + y0 // 8 - 1) * 16

def data_addr(kind, di, lane, half=0):
    m, g = lane & 15, lane >> 4
    if kind == "near":
        return D_U + 2 * (16 * (2 * di + m - (g >> 1)) + 8 * (g & 1) + 256)
    r, c = m >> 2, m & 3
    kp = 8 * g + 4 * half + r
    if kind == "g5": s = 8 * (32 * di - 2 + kp) + 4 * c; return D_U5 + 2 * (s + 20)
    if kind == "g3": s = 8 * (32 * di - 1 + kp) - 4 + 4 * c; return D_U3 + 2 * (s + 20)
    if kind == "g9": s = 16 * (32 * di - 1 + kp) + 4 * c; return D_U9 + 2 * (s + 20)
    if kind == "g7": s = 16 * (32 * di + kp) - 8 + 4 * c; return D_U7 + 2 * (s + 20)

def data_image(u):
    img = np.zeros(DATA_CH // 2)
    up = np.concatenate([np.zeros(32), u, np.zeros(32)])
    box = lambda s, h: up[32 + s - h: 32 + s + h + 1].sum()
    img[D_U // 2 + 256: D_U // 2 + 256 + 2048] = u
    for s in range(-4, 1532):
        img[D_U5 // 2 + s + 20] = box(s, 2); img[D_U3 // 2 + s + 20] = box(s, 1)
    for s in range(-4, 1020):
        img[D_U9 // 2 + s + 20] = box(s, 4); img[D_U7 // 2 + s + 20] = box(s, 3)
    return img

def run(f, u):
    src = tap_sources()
    taps = np.where(src >= 0, f[np.maximum(src, 0)], 0.0)
    dat = data_image(u)
    y = np.zeros(2048)
    n = 0
    for j in range(8):
        D = np.zeros((16, 16))
        for kind, ti, di in conv_steps(j):
            n += 1
            T = np.zeros((16, 32)); X = np.zeros((16, 32))
            for lane in range(64):
                a = tap_addr(kind, ti, lane); assert 0 <= a and a + 16 <= TAP_CH and a % 16 == 0
                T[lane & 15, 8 * (lane >> 4): 8 * (lane >> 4) + 8] = taps[a // 2: a // 2 + 8]
                if kind == "near":
                    a = data_addr(kind, di, lane); assert 0 <= a and a + 16 <= D_U5 and a % 16 == 0, (j, kind, ti, di, lane, a)
                    X[lane & 15, 8 * (lane >> 4): 8 * (lane >> 4) + 8] = dat[a // 2: a // 2 + 8]
                else:
                    for half in range(2):
                        a = data_addr(kind, di, lane, half); assert a % 8 == 0
                        lo = {"g5": D_U5, "g3": D_U3, "g9": D_U9, "g7": D_U7}[kind]
                        hi = {"g5": D_U3, "g3": D_U9, "g9": D_U7, "g7": DATA_CH}[kind]
                        assert lo <= a and a + 8 <= hi, (j, kind, di, lane, half, a)
                        m, g = lane & 15, lane >> 4
                        r, c = m >> 2, m & 3
                        X[4 * c: 4 * c + 4, 8 * g + 4 * half + r] = dat[a // 2: a // 2 + 4]
            if kind == "near": D += T @ X.T
            else: D += X @ T.T
        for b in range(16):
            for a_ in range(16):
                y[16 * (16 * j + a_) + b] = D[b, a_]
    return y, n

if __name__ == "__main__":
    rng = np.random.default_rng(0)
    f = rng.standard_normal(2049)
    u = rng.standard_normal(2048)
    K = np.array([f[bf16r(l)] for l in range(2048)])
    ref = np.convolve(K, u)[:2048]
    y, n = run(f, u)
    print("steps", n, "maxerr", np.abs(y - ref).max(), [len(conv_steps(j)) for j in range(8)])
```

```python
import numpy as np
from layout import *
import model_conv as mc

def positions():
    P = -np.ones((3, 16, 16), dtype=np.int64)
    for j in range(16):
        for r in range(16):
            P[0, r, j] = (r & 7) + 128 * (r >> 3) + 8 * j
            P[1, r, j] = (256 + 2 * (r % 4) + 128 * (r // 4) if r < 8 else 512 + 4 * ((r - 8) % 2) + 128 * ((r - 8) // 2)) + 8 * j
            if r < 9: P[2, r, j] = 1024 + 128 * r + 8 * j
    return P

def part_offset(p):
    P = positions()
    t, r, j = [int(x[0]) for x in np.nonzero(P == p)]
    return t * 1024 + ((r >> 2) * 16 + j) * 16 + (r & 3) * 4

def channels(wg):
    x, j = wg & 7, wg >> 3
    P = x * 16 + (j >> 1); odd = j & 1
    return [5 * P + 3 * odd, 5 * P + 3 * odd + 1, 5 * P + 2]

def fvals(K):
    f = np.zeros((K.shape[0], 2049))
    for l in range(2048):
        f[:, mc.bf16r(l)] = K[:, l]
    return f

def check_partials(D, ref):
    f = fvals(ref["K"].astype(np.float64))
    valid = sorted({mc.bf16r(l) for l in range(2048)})
    off = np.array([part_offset(p) // 4 for p in valid])
    worst = 0
    for wg in range(256):
        ch = channels(wg)
        for s in range(2):
            got = D[wg, 3 * s:3 * s + 3][:, off].astype(np.float64).sum(0) * 2.0 ** -8
            worst = max(worst, np.abs(got - f[ch[s]][valid]).max())
    print("ssm partials maxerr", worst, "max", np.abs(f).max())

def check_taps(D, ref):
    f = fvals(ref["K"].astype(np.float64))
    src = mc.tap_sources()
    used = np.zeros(TAP_CH // 2, bool)
    for j in range(8):
        for kind, ti, di in conv_steps(j):
            for lane in range(64):
                a = mc.tap_addr(kind, ti, lane); used[a // 2: a // 2 + 8] = True
    worst = 0
    for wg in range(256):
        ch = channels(wg)
        inv = D[wg, 3 * TAP_CH + 1664 + 16: 3 * TAP_CH + 1664 + 28].view(np.float32)
        for s in range(3):
            got = D[wg, s * TAP_CH:(s + 1) * TAP_CH].view(np.float16).astype(np.float64) * inv[s]
            want = np.where(src >= 0, f[ch[s]][np.maximum(src, 0)], 0.0)
            worst = max(worst, np.abs(got - want)[used].max())
    print("taps maxerr", worst, "max", np.abs(f).max())
```

```python
import sys, os
sys.path.insert(0, os.path.dirname(os.path.abspath(__file__)))
from mcommon import *
import g_start, g_a1

NAME = "interleave_layers__sliding_local_dilated__ssm_conv_s4d__prompt_kernel"
HEADER = open(os.path.join(os.path.dirname(os.path.abspath(__file__)), "..", "header.txt")).read()


def dump_lds(a, off, nbytes, dst):
    a("s_waitcnt vmcnt(0) lgkmcnt(0)")
    a("s_barrier")
    a(f"""
    s_mul_i32 s{T0}, s2, {nbytes}
    s_add_u32 s{T0}, s{T0}, {dst}
    v_lshlrev_b32 v2, 4, v0
    """)
    for i in range((nbytes + 8191) // 8192):
        a(f"""
        v_add_u32 v3, {i * 8192}, v2
        v_min_u32 v3, {nbytes - 16}, v3
        v_add_u32 v4, {off}, v3
        ds_read_b128 v[8:11], v4
        v_add_u32 v3, s{T0}, v3
        s_waitcnt lgkmcnt(0)
        global_store_dwordx4 v3, v[8:11], {sp(P_WS)}
        """)


def main():
    a = Asm()
    a.raw(f".globl {NAME}\n.p2align 8\n.type {NAME},@function\n{NAME}:")
    g_start.start(a, lambda: g_a1.a1_addresses(a, True), lambda: g_a1.stat_prepass(a))
    if STOP == "ssm":
        dump_lds(a, R_T, 9 * 4608, DBG)
        a("s_branch L_fin")
    g_a1.gemm_all(a, True)
    import g_rest
    g_rest.rest(a, dump_lds)
    a.label("L_fin")
    a(f"""
    s_or_b32 s{T0}, s2, s{S_WAVE}
    s_cmp_eq_u32 s{T0}, 0
    s_cbranch_scc0 L_fin2
    s_mov_b32 s{T0}, {EPOCH}
    """)
    publish(a, T0, 2, 4)
    a.label("L_fin2")
    stamp_flush(a)
    a.label("L_end")
    a("s_endpgm")
    body = a.finish()
    body += g_rest.tables()
    body += "L_code_end:\n"
    out = HEADER + f"; @launch grid=(256,1,1) block=(512,1,1) lds={LDS_BYTES}\n"
    out += '.amdgcn_target "amdgcn-amd-amdhsa--gfx950"\n.text\n' + body
    out += f""".section .rodata,"a"
.p2align 6
.amdhsa_kernel {NAME}
  .amdhsa_next_free_vgpr 256
  .amdhsa_next_free_sgpr 102
  .amdhsa_accum_offset 256
  .amdhsa_group_segment_fixed_size 0
  .amdhsa_kernarg_size 104
  .amdhsa_user_sgpr_count 2
  .amdhsa_user_sgpr_kernarg_segment_ptr 1
  .amdhsa_system_sgpr_workgroup_id_x 1
.end_amdhsa_kernel
"""
    sys.stdout.write(out)


if __name__ == "__main__":
    main()
```

```python
from mcommon import *

XA, XT, RSA, ONES, RES = 2, 6, 7, 10, 10
FR, NFR, ACC = 16, 8, 48
WA = 44

ROLES = {"A": dict(b=(0, 1), q=(0, 1), st=(1,)), "B": dict(b=(0, 1), q=(0, 1), st=(2,)),
         "C": dict(b=(0, 1), q=(), st=()), "D": dict(b=(0, 1), q=(0,), st=(0,)),
         "E": dict(b=(0,), q=(), st=(3, 4))}
WROLE = "ABCDCCCE"


def role_ops(role, L1):
    r = ROLES[role]
    ops, acc = {}, {}
    for mt in range(5):
        l = [("w", b) for b in r["b"] if not (mt == 0 and b in r["q"] and not L1)]
        if mt in r["st"]:
            l += [("S", 0), ("U", 0)]
        if l:
            ops[mt] = l
    for mt in ops:
        for op in ops[mt]:
            acc[(mt, op)] = ACC + 4 * len(acc)
    assert len(acc) <= 12
    return list(ops), ops, acc


def a1_addresses(a, L1):
    a(f"""
    v_and_b32 v16, 15, v1
    v_lshrrev_b32 v17, 4, v1
    v_lshrrev_b32 v18, 2, v16
    v_and_b32 v19, 3, v1
    s_and_b32 s{T0}, s{S_WAVE}, 3
    s_lshr_b32 s{T0 + 1}, s{S_WAVE}, 2
    s_mul_i32 s{T0 + 1}, s{T0 + 1}, 48
    s_mul_i32 s{T0 + 2}, s{S_HG}, 80
    s_add_u32 s{T0 + 1}, s{T0 + 1}, s{T0 + 2}
    """)
    for r in range(4):
        a(f"v_mov_b32 v{ONES + r}, 0x3f803f80")
    if L1:
        a(f"""
        s_mul_i32 s{T0 + 4}, s{S_HG}, 15
        s_lshl_b32 s{T0 + 5}, s{S_WAVE}, 1
        s_add_u32 s{T0 + 4}, s{T0 + 4}, s{T0 + 5}
        s_mul_i32 s{T0 + 4}, s{T0 + 4}, 20480
        s_add_u32 s{T0 + 4}, s{T0 + 4}, {WP}
        """)
        add64(a, T0 + 6, P_WS, f"s{T0 + 4}")
        add64(a, T0 + 8, T0 + 6, 20480)
        for j in range(4):
            a(f"""
            s_xor_b32 s{T0 + 4}, s{S_SK}, {j}
            s_lshl_b32 s{T0 + 4}, s{T0 + 4}, 10
            v_lshl_add_u32 v{WA + j}, v1, 4, s{T0 + 4}
            """)
        a(f"v_mul_u32_u24 v20, 1280, v16")
        a(f"v_add_u32 v20, {R_X}, v20")
        for j in range(4):
            a(f"""
            v_add_u32 v21, {4 * j}, v17
            v_xor_b32 v21, v21, v16
            v_lshl_add_u32 v{XA + j}, v21, 4, v20
            """)
        a(f"""
        v_lshl_add_u32 v20, v17, 2, v18
        s_lshl_b32 s{T0 + 2}, s{S_SK}, 2
        v_xor_b32 v21, s{T0 + 2}, v20
        s_lshl_b32 s{T0 + 2}, s{T0}, 4
        s_add_u32 s{T0 + 2}, s{T0 + 2}, 16
        v_add_u32 v20, s{T0 + 2}, v20
        v_mul_u32_u24 v20, 1280, v20
        v_add_u32 v20, {R_X}, v20
        v_and_b32 v22, 1, v19
        v_lshl_add_u32 v20, v22, 3, v20
        v_lshrrev_b32 v22, 1, v19
        s_lshr_b32 s{T0 + 2}, s{T0 + 1}, 3
        v_add_u32 v22, s{T0 + 2}, v22
        """)
        for i in range(3):
            a(f"""
            v_add_u32 v23, {2 * i}, v22
            v_min_u32 v23, 79, v23
            v_xor_b32 v23, v23, v21
            v_lshl_add_u32 v{RSA + i}, v23, 4, v20
            """)
    else:
        a(f"""
        v_lshl_add_u32 v20, v17, 2, v18
        v_mul_u32_u24 v20, 160, v20
        v_add_u32 v20, {R_X}, v20
        v_lshl_add_u32 v{XA}, v19, 3, v20
        v_add_u32 v{XA + 1}, {12 * 5120}, v{XA}
        s_lshl_b32 s{T0 + 2}, s{T0}, 5
        s_add_u32 s{T0 + 2}, s{T0 + 2}, {R_X + 32}
        v_lshl_add_u32 v20, v17, 3, s{T0 + 2}
        s_lshl_b32 s{T0 + 2}, s{S_SK}, 5
        """)
        for i in range(3):
            a(f"""
            v_add_u32 v21, {16 * i}, v16
            v_add_u32 v21, s{T0 + 1}, v21
            v_min_u32 v21, 639, v21
            v_xor_b32 v21, s{T0 + 2}, v21
            v_and_b32 v22, 0x3e3, v21
            v_bfe_u32 v23, v21, 3, 2
            v_lshl_or_b32 v22, v23, 2, v22
            v_and_b32 v22, 0x3ef, v22
            v_bfe_u32 v23, v21, 2, 1
            v_lshl_or_b32 v22, v23, 4, v22
            v_mul_u32_u24 v22, 160, v22
            v_add_u32 v{RSA + i}, v22, v20
            """)


DMA_STEPS = [(2, 3), (4, 6), (7, 11), (10, 16), (13, 20)]
XPAT = [4, 5, 6, 14, 15]
XPRE = 4


def x2_patterns(a):
    a(f"s_lshl_b32 s{T0 + 2}, s{S_SK}, 5")
    a(f"s_mov_b32 s{T0 + 3}, 52429")
    for k, d in enumerate(XPAT):
        a(f"""
        v_add_u32 v{d}, {512 * k}, v0
        v_mul_u32_u24 v24, s{T0 + 3}, v{d}
        v_lshrrev_b32 v24, 19, v24
        v_mul_u32_u24 v25, 10, v24
        v_sub_u32 v{d}, v{d}, v25
        v_xor_b32 v24, s{T0 + 2}, v24
        v_and_b32 v25, 0xe3, v24
        v_bfe_u32 v26, v24, 2, 2
        v_lshl_or_b32 v25, v26, 3, v25
        v_bfe_u32 v26, v24, 4, 1
        v_lshl_or_b32 v25, v26, 2, v25
        v_lshlrev_b32 v25, 12, v25
        v_lshl_add_u32 v{d}, v{d}, 4, v25
        """)
    a(f"""
    s_lshl_b32 s{T0}, s{S_RB}, 7
    s_add_u32 s{T0}, s{T0}, {X2T - 32}
    s_lshl_b32 s{T0 + 10}, s{S_WAVE}, 10
    """)
    add64(a, T0 + 8, P_WS, f"s{T0}")


def x2_round(a, i):
    if i == 12:
        L = uid("r12")
        a(f"s_cmp_ge_u32 s{S_WAVE}, 4")
        a(f"s_cbranch_scc1 {L}")
    a(f"s_add_u32 m0, s{T0 + 10}, {R_X + 8192 * i}")
    if i and i % 5 == 0:
        add64(a, T0 + 8, T0 + 8, 256 * 4096)
    a(f"global_load_lds_dwordx4 v{XPAT[i % 5]}, {sp(T0 + 8)} sc1")
    if i == 12:
        a.label(L)


def gemm(a, role, L1):
    mts, ops, acc = role_ops(role, L1)
    nB = len(ROLES[role]["b"])
    seq = [(q, mt) for q in range(20) for mt in mts]
    RD = 1 if L1 else 2
    NFR = 7 if L1 else 8
    AHEAD = NFR - 1
    landed = [0]
    rounds = [XPRE]
    steps = list(DMA_STEPS)

    def issue(i):
        q, mt = seq[i]
        f = FR + 4 * (i % NFR)
        if L1:
            if mt == 4:
                a(f"v_add_u32 v{XT}, 81920, v{XA + q % 4}")
                a(f"ds_read_b128 {vq(f)}, v{XT} offset:{(q >> 2) * 256}")
            else:
                a(f"ds_read_b128 {vq(f)}, v{XA + q % 4} offset:{mt * 20480 + (q >> 2) * 256}")
        else:
            while q >= landed[0]:
                n, sl = steps.pop(0)
                assert rounds[0] >= n
                a(f"s_waitcnt vmcnt({min(rounds[0], 12) - min(n, 12) if n < 13 else 0})")
                if os.environ.get("GST"):
                    a(f"s_memtime s[{STP}:{STP + 1}]")
                a("s_barrier")
                if os.environ.get("GST"):
                    a("s_waitcnt lgkmcnt(0)")
                    a(f"s_mov_b32 s{62 + 1 + 2 * min(3, 4 - len(steps))}, s{STP}")
                    stamp(a, 2 + 2 * min(3, 4 - len(steps)))
                landed[0] = sl
            b, o = (XA, q * 5120) if q < 12 else (XA + 1, (q - 12) * 5120)
            a(f"ds_read_b64_tr_b16 v[{f}:{f + 1}], v{b} offset:{o + 32 * mt}")
            a(f"ds_read_b64_tr_b16 v[{f + 2}:{f + 3}], v{b} offset:{o + 32 * mt + 2560}")

    WAH = 8
    WPRE = int(os.environ.get('WPRE', '4'))

    def wload(q):
        for b in ROLES[role]["b"]:
            a(f"global_load_dwordx4 {vq(WREG + 80 * b + 4 * q)}, v{WA + q % 4}, {sp(T0 + 6 + 2 * b)} sc1")
        if q % 4 == 3 and q < 19:
            for b in ROLES[role]["b"]:
                add64(a, T0 + 6 + 2 * b, T0 + 6 + 2 * b, 4096)

    if L1:
        for q in range(WPRE):
            wload(q)
        a("s_waitcnt lgkmcnt(0)")
        a("s_barrier")
        stamp(a, 4)
        for q in range(WPRE, WAH):
            wload(q)
    for i in range(AHEAD):
        issue(i)
    for i, (q, mt) in enumerate(seq):
        if L1 and mt == mts[0] and q + WAH < 20:
            wload(q + WAH)
        if not L1 and mt == mts[1] and rounds[0] < 13:
            x2_round(a, rounds[0])
            rounds[0] += 1
        if i + AHEAD < len(seq):
            issue(i + AHEAD)
        later = min(AHEAD, len(seq) - 1 - i)
        w = f"lgkmcnt({RD * later})"
        if L1 and mt == mts[0]:
            w = f"vmcnt({nB * (min(q + WAH, 19) - q)}) " + w
        a(f"s_waitcnt {w}")
        f = vq(FR + 4 * (i % NFR))
        for op in ops[mt]:
            c = vq(acc[(mt, op)])
            A = vq(WREG + 80 * op[1] + 4 * q) if op[0] == "w" else f if op[0] == "S" else vq(ONES)
            a(f"v_mfma_f32_16x16x32_bf16 {c}, {A}, {f}, {c if q else 0}")
    if os.environ.get("GST") and not L1:
        stamp(a, 9)
    for i in range(3):
        if L1:
            a(f"ds_read_b64_tr_b16 v[{RES + 2 * i}:{RES + 2 * i + 1}], v{RSA + i}")
        else:
            a(f"ds_read_b64 v[{RES + 2 * i}:{RES + 2 * i + 1}], v{RSA + i}")
    a(f"""
    v_and_b32 v16, 15, v1
    v_lshrrev_b32 v17, 4, v1
    """)
    st = ROLES[role]["st"]
    if st:
        a(f"""
        v_and_b32 v18, 3, v1
        v_lshrrev_b32 v19, 2, v16
        v_cmp_eq_u32 {sp(T0)}, 1, v18
        v_cmp_eq_u32 {sp(T0 + 2)}, 2, v18
        v_cmp_eq_u32 {sp(T0 + 4)}, 3, v18
        v_cmp_eq_u32 {sp(T0 + 6)}, v19, v17
        v_lshlrev_b32 v18, 3, v16
        v_add_u32 v18, {L_ST}, v18
        """)
        P = [(acc[(mt, ("U", 0))], acc[(mt, ("S", 0))]) for mt in st]
        for c in range(3):
            for su, sq in P:
                a(f"v_cndmask_b32 v{sq}, v{sq}, v{sq + 1 + c}, {sp(T0 + 2 * c)}")
        for su, sq in P:
            a(f"v_mul_f32 v{su}, 0x3acccccd, v{su}")
            a(f"v_mul_f32 v{sq}, 0x3acccccd, v{sq}")
        for su, sq in P:
            a(f"v_fma_f32 v{sq}, -v{su}, v{su}, v{sq}")
        for su, sq in P:
            a(f"v_max_f32 v{sq}, 0, v{sq}")
        for su, sq in P:
            a(f"v_cvt_pk_bf16_f32 v{su}, v{su}, v{sq}")
        for su, sq in P:
            a(f"v_and_b32 v{sq}, 0xffff0000, v{su}")
            a(f"v_lshlrev_b32 v{su}, 16, v{su}")
        for su, sq in P:
            a(f"v_add_f32 v{sq}, 0x3727c5ac, v{sq}")
        for su, sq in P:
            a(f"v_cvt_pk_bf16_f32 v{sq}, v{sq}, v{sq}")
        for su, sq in P:
            a(f"v_lshlrev_b32 v{sq}, 16, v{sq}")
        for su, sq in P:
            a(f"v_sqrt_f32 v{sq}, v{sq}")
        for su, sq in P:
            a(f"v_cvt_pk_bf16_f32 v{sq}, v{sq}, v{sq}")
        for su, sq in P:
            a(f"v_lshlrev_b32 v{sq}, 16, v{sq}")
        for su, sq in P:
            a(f"v_rcp_f32 v{su + 1}, v{sq}")
        a(f"s_mov_b64 exec, {sp(T0 + 6)}")
        for mt, (su, sq) in zip(st, P):
            a(f"ds_write_b64 v18, v[{su}:{su + 1}] offset:{128 * mt}")
        a("s_mov_b64 exec, -1")
    a(f"""
    s_lshl_b32 s{T0}, s{S_WAVE}, 7
    s_add_u32 s{T0}, s{T0}, {L_CS}
    v_lshl_add_u32 v19, v17, 4, s{T0}
    """)
    if L1:
        a("s_mov_b64 exec, 0x10001")
        a("s_mov_b32 exec_hi, 0x10001")
        for b in ROLES[role]["b"]:
            a(f"ds_write_b128 v19, {vq(acc[(0, ('w', b))])} offset:{64 * b}")
        a("s_mov_b64 exec, -1")
    eo = role in "ABC"
    a(f"""
    s_lshl_b32 s{T0}, s{S_WAVE}, 6
    s_cmp_eq_u32 s{S_WAVE}, 2
    s_cselect_b32 s{T0}, 192, s{T0}
    s_cmp_eq_u32 s{S_WAVE}, 3
    s_cselect_b32 s{T0}, 128, s{T0}
    s_add_u32 s{T0}, s{T0}, {R_X}
    v_mul_u32_u24 v20, {QS}, v16
    v_lshl_add_u32 v20, v17, {4 if eo else 3}, v20
    v_add_u32 v20, s{T0}, v20
    v_lshlrev_b32 v18, 3, v16
    v_add_u32 v18, {L_ST}, v18
    s_waitcnt lgkmcnt(0)
    s_barrier
    """)
    stamp_l(a, 6, 14)
    emts = [mt for mt in mts if any(op[0] == "w" and not (mt == 0 and op[1] in ROLES[role]["q"]) for op in ops[mt])]
    MS, CSR = 24, 36
    for mt in emts:
        a(f"ds_read_b64 v[{MS + 2 * mt}:{MS + 2 * mt + 1}], v18 offset:{128 * mt}")
    for b in ROLES[role]["b"]:
        a(f"ds_read_b128 {vq(CSR + 4 * b)}, v19 offset:{64 * b}")
    a("s_waitcnt lgkmcnt(0)")
    tl = [(mt, b) for mt in emts for b in ROLES[role]["b"] if not (mt == 0 and b in ROLES[role]["q"])]
    for mt, b in tl:
        c = acc[(mt, ("w", b))]
        for r in range(4):
            a(f"v_fma_f32 v{c + r}, -v{MS + 2 * mt}, v{CSR + 4 * b + r}, v{c + r}")
    for mt, b in tl:
        c = acc[(mt, ("w", b))]
        for r in range(4):
            a(f"v_mul_f32 v{c + r}, v{c + r}, v{MS + 2 * mt + 1}")
    if eo:
        for mt in emts:
            e, o = acc[(mt, ("w", 0))], acc[(mt, ("w", 1))]
            for r in range(4):
                a(f"v_cvt_pk_bf16_f32 v{e + r}, v{e + r}, v{o + r}")
            a(f"ds_write_b128 v20, {vq(e)} offset:{16 * mt * QS}")
    else:
        for mt, b in tl:
            c = acc[(mt, ("w", b))]
            a(f"v_cvt_pk_bf16_f32 v{c}, v{c}, v{c + 1}")
            a(f"v_cvt_pk_bf16_f32 v{c + 1}, v{c + 2}, v{c + 3}")
            a(f"ds_write_b64 v20, v[{c}:{c + 1}] offset:{16 * mt * QS + 32 * b}")


def gemm_all(a, L1):
    tag = "g1" if L1 else "g2"
    a(f"""
    s_cmp_eq_u32 s{S_WAVE}, 0
    s_cbranch_scc1 L_{tag}A
    s_cmp_eq_u32 s{S_WAVE}, 1
    s_cbranch_scc1 L_{tag}B
    s_cmp_eq_u32 s{S_WAVE}, 3
    s_cbranch_scc1 L_{tag}D
    s_cmp_eq_u32 s{S_WAVE}, 7
    s_cbranch_scc1 L_{tag}E
    """)
    for role in "CABDE":
        if role != "C":
            a.label(f"L_{tag}{role}")
        gemm(a, role, L1)
        a("s_branch L_a1_post")


def attention(a):
    Q, K, S, O, P = 16, 26, 56, 68, 88
    a(f"""
    v_bfe_u32 v2, v1, 2, 1
    v_lshrrev_b32 v3, 5, v1
    v_bfe_u32 v4, v1, 2, 2
    v_and_b32 v5, 3, v1
    s_and_b32 s{T0 + 1}, s{S_WAVE}, 1
    s_lshl_b32 s{T0 + 1}, s{T0 + 1}, 2
    v_bfe_u32 v6, v1, 3, 2
    v_add_u32 v6, s{T0 + 1}, v6
    v_lshl_add_u32 v7, v6, 2, v5
    v_lshl_add_u32 v7, v7, 1, v2
    s_lshr_b32 s{T0}, s{S_WAVE}, 1
    s_mul_i32 s{T0}, s{T0}, 80
    s_add_u32 s{T0}, s{T0}, {R_X}
    v_mul_u32_u24 v94, 40, v3
    v_add_u32 v94, s{T0}, v94
    v_mul_u32_u24 v8, {QS}, v7
    v_add_u32 v8, v94, v8
    v_bfe_u32 v9, v1, 4, 1
    v_lshl_add_u32 v9, v9, 1, s{T0 + 1}
    v_bfe_u32 v2, v1, 1, 1
    v_add_u32 v9, v9, v2
    v_lshl_add_u32 v9, v9, 2, v4
    v_and_b32 v2, 1, v1
    v_lshl_add_u32 v9, v9, 1, v2
    v_mul_u32_u24 v9, {QS}, v9
    v_add_u32 v9, v94, v9
    v_mul_u32_u24 v2, 40, v3
    v_lshl_add_u32 v9, v3, 3, v9
    v_sub_u32 v94, v9, v2
    """)
    for j in range(5):
        a(f"ds_read_b64 v[{Q + 2 * j}:{Q + 2 * j + 1}], v8 offset:{16 * QS + 8 * j}")
    for d in (1, 0):
        for j in range(5):
            a(f"ds_read_b64 v[{K + 10 * d + 2 * j}:{K + 10 * d + 2 * j + 1}], v8 offset:{(16 - 8 * d) * QS + 160 + 8 * j}")
    a("s_waitcnt lgkmcnt(10)")
    for j in range(5):
        a(f"ds_read_b64 v[{K + 20 + 2 * j}:{K + 20 + 2 * j + 1}], v8 offset:{160 + 8 * j}")
    a(f"""
    s_mul_i32 s{T0}, s{S_HG}, 10
    s_lshr_b32 s{T0 + 1}, s{S_WAVE}, 1
    s_mul_i32 s{T0 + 1}, s{T0 + 1}, 5
    s_add_u32 s{T0}, s{T0}, s{T0 + 1}
    s_lshl_b32 s{T0}, s{T0}, 8
    s_mul_i32 s{T0 + 1}, s{S_RB}, {4 * 20480}
    s_add_u32 s{T0}, s{T0}, s{T0 + 1}
    s_add_u32 s{T0}, s{T0}, s{S_BOFF}
    s_add_u32 s{T0}, s{T0}, {OB}
    v_mul_u32_u24 v4, 768, v3
    v_lshrrev_b32 v2, 4, v7
    v_mul_u32_u24 v2, 20480, v2
    v_and_b32 v3, 15, v7
    v_lshl_add_u32 v2, v3, 4, v2
    v_add_u32 v2, v2, v4
    v_add_u32 v2, s{T0}, v2
    v_cmp_le_u32 {sp(T0 + 2)}, 1, v5
    v_cmp_le_u32 {sp(T0 + 4)}, 2, v5
    v_cmp_le_u32 {sp(T0 + 6)}, 3, v5
    v_mov_b32 v3, 0xffff
    v_cndmask_b32 v4, 0, v3, {sp(T0 + 4)}
    v_cndmask_b32 v3, v3, -1, {sp(T0 + 2)}
    v_cndmask_b32 v4, v4, -1, {sp(T0 + 6)}
    s_waitcnt lgkmcnt(5)
    """)
    for j in range(5):
        for d in (1, 0):
            c = vq(S + 4 * d)
            a(f"v_mfma_f32_4x4x4_16b_bf16 {c}, v[{K + 10 * d + 2 * j}:{K + 10 * d + 2 * j + 1}], v[{Q + 2 * j}:{Q + 2 * j + 1}], {c if j else 0}")
    a("s_waitcnt lgkmcnt(0)")
    for j in range(5):
        c = vq(S + 8)
        a(f"v_mfma_f32_4x4x4_16b_bf16 {c}, v[{K + 20 + 2 * j}:{K + 20 + 2 * j + 1}], v[{Q + 2 * j}:{Q + 2 * j + 1}], {c if j else 0}")
    for d in range(3):
        for j in range(5):
            a(f"ds_read_b64_tr_b16 v[{K + 10 * d + 2 * j}:{K + 10 * d + 2 * j + 1}], v{9 if j < 4 else 94} offset:{(16 - 8 * d) * QS + 320 + 8 * j}")
    a(f"""
    s_cmp_lg_u32 s{S_RB}, 0
    s_cbranch_scc1 L_at_nomask
    v_mov_b32 v{P}, 0xce6e6b28
    v_cmp_eq_u32 vcc, 0, v6
    v_cmp_ge_u32 {sp(T0 + 8)}, 1, v6
    """)
    for r in range(4):
        a(f"v_cndmask_b32 v{S + 4 + r}, v{S + 4 + r}, v{P}, vcc")
    for r in range(1, 4):
        a(f"v_cndmask_b32 v{S + 8 + r}, v{S + 8 + r}, v{P}, {sp(T0 + 8)}")
    a.label("L_at_nomask")
    for r in range(1, 4):
        a(f"v_cndmask_b32 v{S + r}, v{S + 8 + r}, v{S + r}, {sp(T0 + 2 * r)}")

    def round8():
        for w in range(4):
            a(f"v_cvt_pk_bf16_f32 v{P + w}, v{S + 2 * w}, v{S + 2 * w + 1}")
        for w in range(4):
            a(f"v_lshlrev_b32 v{S + 2 * w}, 16, v{P + w}")
            a(f"v_and_b32 v{S + 2 * w + 1}, 0xffff0000, v{P + w}")

    round8()
    a(f"s_mov_b32 s{T0 + 8}, {SCALE}")
    a(f"s_mov_b32 s{T0 + 9}, {SCALE}")
    for w in range(4):
        a(f"v_pk_mul_f32 v[{S + 2 * w}:{S + 2 * w + 1}], v[{S + 2 * w}:{S + 2 * w + 1}], {sp(T0 + 8)}")
    round8()
    a(f"""
    v_max3_f32 v{P}, v{S}, v{S + 1}, v{S + 2}
    v_max3_f32 v{P + 1}, v{S + 3}, v{S + 4}, v{S + 5}
    v_max3_f32 v{P}, v{P}, v{S + 6}, v{S + 7}
    v_max_f32 v{P}, v{P}, v{P + 1}
    s_mov_b32 s{T0 + 8}, {LOG2E}
    s_mov_b32 s{T0 + 9}, {LOG2E}
    v_mov_b32 v{P + 1}, v{P}
    """)
    for w in range(4):
        a(f"v_pk_add_f32 v[{S + 2 * w}:{S + 2 * w + 1}], v[{S + 2 * w}:{S + 2 * w + 1}], v[{P}:{P + 1}] neg_lo:[0,1] neg_hi:[0,1]")
    for w in range(4):
        a(f"v_pk_mul_f32 v[{S + 2 * w}:{S + 2 * w + 1}], v[{S + 2 * w}:{S + 2 * w + 1}], {sp(T0 + 8)}")
    for w in range(8):
        a(f"v_exp_f32 v{S + w}, v{S + w}")
    a(f"""
    v_add_f32 v{P}, v{S}, v{S + 1}
    v_add_f32 v{P + 1}, v{S + 2}, v{S + 3}
    v_add_f32 v{P + 2}, v{S + 4}, v{S + 5}
    v_add_f32 v{P + 3}, v{S + 6}, v{S + 7}
    v_add_f32 v{P}, v{P}, v{P + 1}
    v_add_f32 v{P + 2}, v{P + 2}, v{P + 3}
    v_add_f32 v{P}, v{P}, v{P + 2}
    v_rcp_f32 v{P}, v{P}
    """)
    for w in range(8):
        a(f"v_mul_f32 v{S + w}, v{S + w}, v{P}")
    a(f"""
    v_cvt_pk_bf16_f32 v{P + 4}, v{S}, v{S + 1}
    v_cvt_pk_bf16_f32 v{P + 5}, v{S + 2}, v{S + 3}
    v_cvt_pk_bf16_f32 v{P + 2}, v{S + 4}, v{S + 5}
    v_cvt_pk_bf16_f32 v{P + 3}, v{S + 6}, v{S + 7}
    v_and_b32 v{P}, v3, v{P + 4}
    v_and_b32 v{P + 1}, v4, v{P + 5}
    v_xor_b32 v{P + 4}, v{P}, v{P + 4}
    v_xor_b32 v{P + 5}, v{P + 1}, v{P + 5}
    s_waitcnt lgkmcnt(0)
    """)
    for d in (1, 0, 2):
        for j in range(5):
            c = vq(O + 4 * j)
            a(f"v_mfma_f32_4x4x4_16b_bf16 {c}, v[{K + 10 * d + 2 * j}:{K + 10 * d + 2 * j + 1}], v[{P + 2 * d}:{P + 2 * d + 1}], {0 if d == 1 else c}")
    for i in range(10):
        a(f"v_cvt_pk_bf16_f32 v{Q + i}, v{O + 2 * i}, v{O + 2 * i + 1}")
    a(f"""
    global_store_dwordx4 v2, {vq(Q)}, {sp(P_WS)} sc1
    global_store_dwordx4 v2, {vq(Q + 4)}, {sp(P_WS)} offset:256 sc1
    v_mov_b32 v{Q + 10}, v{Q + 8}
    v_mov_b32 v{Q + 11}, v{Q + 9}
    v_permlane32_swap_b32 v{Q + 8}, v{Q + 10}
    v_permlane32_swap_b32 v{Q + 9}, v{Q + 11}
    s_mov_b32 exec_hi, 0
    global_store_dwordx4 v2, {vq(Q + 8)}, {sp(P_WS)} offset:512 sc1
    s_mov_b64 exec, -1
    """)
```

```python
from mcommon import *
import g_a1, g_start
import model_conv as mc
import model_ssm as ms
import numpy as np

RES = g_a1.RES
UB = g_start.UB
SEC = dict(near=(0, 600), g9=(600, 104), g7=(704, 104), g5=(808, 136), g3=(944, 136))
NLIN = 1080
LINB = 2304
LIN = R_X


LM = R_X + 3 * DATA_CH
LR = LM + 4096
SGS = 144
SG = R_X + 20480


def lin_sources():
    out = []
    near = lambda l: mc.bf16r(l) if 0 <= l <= 514 else 1024 if l in (547, 548) else -1
    g = {"g9": lambda m: 16 * m if 65 <= m <= 128 else -1, "g7": lambda m: 16 * m + 8 if 64 <= m <= 127 else -1,
         "g5": lambda m: 8 * m if 65 <= m <= 128 else -1, "g3": lambda m: 8 * m + 4 if 64 <= m <= 127 else -1}
    top = {"g9": 129, "g7": 128, "g5": 162, "g3": 161}
    for k, (b, n) in SEC.items():
        for x in range(n):
            out.append(near(576 - x) if k == "near" else g[k](top[k] - x))
    return out


def chunk_table():
    out = []

    def add(sec, x0, dst):
        x = SEC[sec][0] + x0
        out.append((2 * x if x % 2 == 0 else LINB + 2 * (x + 1), dst))

    for sg in range(8):
        for sl in range(73):
            add("near", 8 * (sl + 1) - sg, (sg * TS8 + T_NEAR + sl) * 16)
        for sl in range(11):
            add("g9", 8 * (sl + 1) - sg, (sg * TS8 + T_G9 + sl) * 16)
            add("g7", 8 * (sl + 1) - sg, (sg * TS8 + T_G7 + sl) * 16)
    for q in range(4):
        for sl in range(15):
            add("g5", 8 * (sl + 1) - 2 * q, T4_BASE + (q * TS4 + T_G5 + sl) * 16)
            add("g3", 8 * (sl + 1) - 2 * q, T4_BASE + (q * TS4 + T_G3 + sl) * 16)
    return out


def tables():
    t1 = [ms.part_offset(p) if p >= 0 else 3072 for p in lin_sources()]
    t1 += [3072] * (1088 - len(t1))
    t2 = chunk_table()
    t2 += [t2[-1]] * (1024 - len(t2))
    s = ".p2align 7\nL_tab1:\n"
    for i in range(0, len(t1), 16):
        s += ".short " + ", ".join(str(v) for v in t1[i:i + 16]) + "\n"
    s += "L_tab2:\n"
    for i in range(0, len(t2), 8):
        s += ".long " + ", ".join(str(a | (b << 16)) for a, b in t2[i:i + 8]) + "\n"
    return s + ".fill 32, 4, 0\n"


def wo_dma(a, q0, per):
    a(f"""
    s_sub_u32 s{T0}, s{S_WAVE}, 4
    s_mul_i32 s{T0}, s{T0}, {per * 1024}
    s_add_u32 s{T0}, s{T0}, {q0 * 1024}
    s_mul_i32 s{T0 + 1}, s{S_HG}, 102400
    s_add_u32 s{T0 + 1}, s{T0 + 1}, s{T0}
    s_add_u32 s{T0 + 1}, s{T0 + 1}, {WOP}
    v_lshlrev_b32 v24, 4, v1
    """)
    add64(a, T0 + 2, P_WS, f"s{T0 + 1}")
    for i in range(per):
        if i % 4 == 0:
            a(f"s_add_u32 m0, s{T0}, {R_X + i * 1024}")
            if i:
                add64(a, T0 + 2, T0 + 2, 4096)
        a(f"global_load_lds_dwordx4 v24, {sp(T0 + 2)} offset:{1024 * (i % 4)} sc1")


def post_gemm(a):
    a.label("L_a1_post")
    a(f"""
    s_cmp_lt_u32 s{S_WAVE}, 4
    s_cbranch_scc1 L_pg_lo
    s_cmp_eq_u32 s{S_WAVE}, 7
    s_cbranch_scc0 L_pg_n9
    s_cmp_eq_u32 s{S_LAYER}, 0
    s_cbranch_scc0 L_pg_n9
    s_mov_b32 s{T0 + 1}, 2
    """)
    g_start.param_addr(a, S_CH + 2, T0 + 1)
    g_start.param_loads(a)
    a.label("L_pg_n9")
    a(f"""
    s_waitcnt lgkmcnt(0)
    s_barrier
    """)
    wo_dma(a, 40, 15)
    a(f"""
    s_cmp_eq_u32 s{S_WAVE}, 7
    s_cbranch_scc0 L_pg_p2
    s_cmp_eq_u32 s{S_LAYER}, 0
    s_cbranch_scc0 L_pg_p2
    """)
    for r in range(6):
        a(f"v_mov_b32 v{180 + r}, v{RES + r}")
    a(f"""
    s_mov_b32 s{T0 + 4}, {R_T + 8 * UB}
    s_waitcnt vmcnt(15)
    """)
    g_start.ssm_unit(a, T0 + 4)
    for r in range(6):
        a(f"v_mov_b32 v{RES + r}, v{180 + r}")
    a.label("L_pg_p2")
    a(f"""
    s_lshl_b32 s{T0}, s{S_LAYER}, 2
    s_add_u32 s{T0}, s{T0}, {L_CTR + 16}
    """)
    lds_spin(a, f"s{T0}", 5, 30, 31)
    wo_dma(a, 0, 10)
    a("s_branch L_pg_join")
    a.label("L_pg_lo")
    a(f"""
    s_waitcnt lgkmcnt(0)
    s_barrier
    """)
    stamp_l(a, 7, 14)
    g_a1.attention(a)
    stamp_l(a, 8, 14)
    a(f"""
    s_lshl_b32 s{T0}, s{S_LAYER}, 2
    s_add_u32 s{T0}, s{T0}, {L_CTR + 16}
    s_waitcnt vmcnt(0)
    """)
    lds_last(a, f"s{T0}", 4, 2, 4)
    a(f"""
    s_cbranch_scc0 L_pg_np
    s_lshl_b32 s{T0 + 1}, s{S_RB}, 3
    s_add_u32 s{T0 + 1}, s{T0 + 1}, s{S_HG}
    s_lshl_b32 s{T0 + 1}, s{T0 + 1}, 7
    s_add_u32 s{T0 + 1}, s{T0 + 1}, s{S_FOFF}
    s_add_u32 s{T0 + 1}, s{T0 + 1}, {FLAGS + ST_O0 * FSTAGE}
    """)
    publish(a, T0 + 1, 3, 4)
    a(f"""
    v_mov_b32 v3, 1
    s_mov_b64 exec, 1
    ds_add_u32 v2, v3
    s_mov_b64 exec, -1
    """)
    a.label("L_pg_np")
    stamp_l(a, 9, 14)
    a(f"""
    s_cmp_eq_u32 s{S_WAVE}, 0
    s_cbranch_scc0 L_pg_join
    s_lshl_b32 s{T0}, s{S_RB}, 10
    s_add_u32 s{T0}, s{T0}, s{S_FOFF}
    s_add_u32 s{T0}, s{T0}, {FLAGS + ST_O0 * FSTAGE}
    v_and_b32 v2, 7, v1
    v_lshl_add_u32 v2, v2, 7, s{T0}
    """)
    poll(a, [2], 4)
    a.label("L_pg_join")


def treduce(a, V, even, lo2, tmp):
    K, S = tmp, tmp + 4
    for p in range(2):
        for c in range(2):
            a(f"v_cndmask_b32 v{K + 2 * p + c}, v{V[2 * p + 1][c]}, v{V[2 * p][c]}, {sp(even)}")
            a(f"v_cndmask_b32 v{S + 2 * p + c}, v{V[2 * p][c]}, v{V[2 * p + 1][c]}, {sp(even)}")
    for i in range(4):
        a(f"v_add_f32_dpp v{K + i}, v{S + i}, v{K + i} quad_perm:[1,0,3,2] row_mask:0xf bank_mask:0xf")
    for c in range(2):
        a(f"v_cndmask_b32 v{S + c}, v{K + c}, v{K + 2 + c}, {sp(lo2)}")
        a(f"v_cndmask_b32 v{K + c}, v{K + 2 + c}, v{K + c}, {sp(lo2)}")
    for c in range(2):
        a(f"v_add_f32_dpp v{K + c}, v{S + c}, v{K + c} quad_perm:[2,3,0,1] row_mask:0xf bank_mask:0xf")
    for sh in (4, 8):
        for c in range(2):
            a(f"v_add_f32_dpp v{K + c}, v{K + c}, v{K + c} row_ror:{sh} row_mask:0xf bank_mask:0xf")


def a2(a):
    OF, AC, RG, NRG = 16, 56, 76, 5
    a(f"""
    v_and_b32 v6, 15, v1
    v_lshrrev_b32 v7, 4, v1
    s_and_b32 s{T0}, s{S_WAVE}, 3
    s_lshr_b32 s{T0 + 1}, s{S_WAVE}, 2
    s_lshl_b32 s{T0 + 2}, s{S_RB}, 2
    s_add_u32 s{T0 + 2}, s{T0 + 2}, s{T0}
    s_mul_i32 s{T0 + 2}, s{T0 + 2}, 20480
    s_mul_i32 s{T0 + 3}, s{T0 + 1}, 10240
    s_add_u32 s{T0 + 2}, s{T0 + 2}, s{T0 + 3}
    s_add_u32 s{T0 + 2}, s{T0 + 2}, s{S_BOFF}
    s_add_u32 s{T0 + 2}, s{T0 + 2}, {OB}
    v_lshl_add_u32 v2, v1, 4, s{T0 + 2}
    v_add_u32 v3, 4096, v2
    v_add_u32 v4, 8192, v2
    s_mul_i32 s{T0 + 3}, s{T0 + 1}, 51200
    s_add_u32 s{T0 + 3}, s{T0 + 3}, {R_X}
    v_lshrrev_b32 v5, 2, v1
    v_mul_u32_u24 v5, 160, v5
    v_and_b32 v8, 3, v1
    v_lshl_add_u32 v5, v8, 3, v5
    v_add_u32 v5, s{T0 + 3}, v5
    s_waitcnt vmcnt(0) lgkmcnt(0)
    s_barrier
    """)
    stamp_l(a, 10, 14)
    for s in range(10):
        a(f"global_load_dwordx4 {vq(OF + 4 * s)}, v{2 + s // 4}, {sp(P_WS)} offset:{1024 * (s % 4)} sc1")
    seq = [(s, nt) for s in range(10) for nt in range(5)]

    def issue(i):
        s, nt = seq[i]
        f = RG + 4 * (i % NRG)
        a(f"ds_read_b64_tr_b16 v[{f}:{f + 1}], v5 offset:{s * 5120 + 32 * nt}")
        a(f"ds_read_b64_tr_b16 v[{f + 2}:{f + 3}], v5 offset:{s * 5120 + 32 * nt + 2560}")

    AH = NRG - 1
    for i in range(AH):
        issue(i)
    a(f"""
    s_mul_i32 s{T0 + 2}, s{T0}, 5120
    s_add_u32 s{T0 + 2}, s{T0 + 2}, {R_X}
    v_lshl_add_u32 v2, v1, 4, s{T0 + 2}
    s_mul_i32 s{T0 + 2}, s{T0 + 1}, {48 * SGS}
    s_lshl_b32 s{T0 + 3}, s{T0}, 5
    s_add_u32 s{T0 + 2}, s{T0 + 2}, s{T0 + 3}
    s_add_u32 s{T0 + 2}, s{T0 + 2}, {SG}
    v_mul_u32_u24 v3, {SGS}, v6
    v_lshl_add_u32 v3, v7, 3, v3
    v_add_u32 v3, s{T0 + 2}, v3
    s_mul_i32 s{T0 + 2}, s{S_LAYER}, {STATS_L}
    s_lshl_b32 s{T0 + 3}, s{S_RB}, 9
    s_add_u32 s{T0 + 2}, s{T0 + 2}, s{T0 + 3}
    s_lshl_b32 s{T0 + 3}, s{T0}, 7
    s_add_u32 s{T0 + 2}, s{T0 + 2}, s{T0 + 3}
    s_add_u32 s{T0 + 2}, s{T0 + 2}, {STATS}
    v_lshl_add_u32 v9, v7, 2, v8
    v_lshl_add_u32 v9, v9, 3, s{T0 + 2}
    v_and_b32 v8, 4, v1
    v_add_u32 v9, v9, v8
    v_cmp_eq_u32 {sp(T0 + 8)}, 0, v8
    v_and_b32 v8, 1, v1
    v_cmp_eq_u32 {sp(T0 + 4)}, 0, v8
    v_and_b32 v8, 2, v1
    v_cmp_eq_u32 {sp(T0 + 6)}, 0, v8
    """)
    for i, (s, nt) in enumerate(seq):
        if i + AH < len(seq):
            issue(i + AH)
        w = f"lgkmcnt({2 * min(AH, len(seq) - 1 - i)})"
        if nt == 0:
            w = f"vmcnt({9 - s}) " + w
        a(f"s_waitcnt {w}")
        c = vq(AC + 4 * nt)
        a(f"v_mfma_f32_16x16x32_bf16 {c}, {vq(OF + 4 * s)}, {vq(RG + 4 * (i % NRG))}, {c if s else 0}")
    a("s_barrier")
    stamp_l(a, 11, 14)
    a(f"""
    s_cmp_ge_u32 s{S_WAVE}, 4
    s_cbranch_scc1 L_a2_k1
    """)
    for kh in range(2):
        if kh:
            a.label("L_a2_k1")
        keep = [0, 1, 2] if kh == 0 else [3, 4]
        send = [3, 4] if kh == 0 else [0, 1, 2]
        N = range(len(keep))
        for nt in send:
            a(f"ds_write_b128 v2, {vq(AC + 4 * nt)} offset:{1024 * nt}")
        a("s_waitcnt lgkmcnt(0)")
        a("s_barrier")
        PA, XF, XB, TM = 16, 28, 40, 46
        for i, nt in enumerate(keep):
            a(f"ds_read_b128 {vq(PA + 4 * i)}, v2 offset:{1024 * nt}")
        for i in N:
            a(f"""
            v_lshlrev_b32 v{XF + 4 * i}, 16, v{RES + 2 * i}
            v_and_b32 v{XF + 4 * i + 1}, 0xffff0000, v{RES + 2 * i}
            v_lshlrev_b32 v{XF + 4 * i + 2}, 16, v{RES + 2 * i + 1}
            v_and_b32 v{XF + 4 * i + 3}, 0xffff0000, v{RES + 2 * i + 1}
            """)
        a("s_waitcnt lgkmcnt(0)")

        def unpack(d, s):
            a(f"""
            v_lshlrev_b32 v{d}, 16, v{s}
            v_and_b32 v{d + 1}, 0xffff0000, v{s}
            v_lshlrev_b32 v{d + 2}, 16, v{s + 1}
            v_and_b32 v{d + 3}, 0xffff0000, v{s + 1}
            """)

        def pack(d, s):
            a(f"v_cvt_pk_bf16_f32 v{d}, v{s}, v{s + 1}")
            a(f"v_cvt_pk_bf16_f32 v{d + 1}, v{s + 2}, v{s + 3}")

        for i, nt in enumerate(keep):
            for r in range(4):
                a(f"v_add_f32 v{PA + 4 * i + r}, v{PA + 4 * i + r}, v{AC + 4 * nt + r}")
        for i in N:
            pack(XB + 2 * i, PA + 4 * i)
        for i in N:
            unpack(PA + 4 * i, XB + 2 * i)
        for i in N:
            for r in range(4):
                a(f"v_add_f32 v{XF + 4 * i + r}, v{XF + 4 * i + r}, v{PA + 4 * i + r}")
        for i in N:
            pack(XB + 2 * i, XF + 4 * i)
        for i in N:
            a(f"ds_write_b64 v3, v[{XB + 2 * i}:{XB + 2 * i + 1}] offset:{16 * SGS * i}")
        for i in N:
            unpack(XF + 4 * i, XB + 2 * i)
        SU, SQ = 56, 60
        for r in range(4):
            a(f"v_add_f32 v{SU + r}, v{XF + r}, v{XF + 4 + r}")
            a(f"v_mul_f32 v{SQ + r}, v{XF + r}, v{XF + r}")
        for r in range(4):
            a(f"v_fmac_f32 v{SQ + r}, v{XF + 4 + r}, v{XF + 4 + r}")
        if kh == 0:
            for r in range(4):
                a(f"v_add_f32 v{SU + r}, v{SU + r}, v{XF + 8 + r}")
                a(f"v_fmac_f32 v{SQ + r}, v{XF + 8 + r}, v{XF + 8 + r}")
        treduce(a, [(SU + r, SQ + r) for r in range(4)], T0 + 4, T0 + 6, 64)
        a(f"""
        v_cndmask_b32 v64, v65, v64, {sp(T0 + 8)}
        s_mov_b32 exec_lo, 0x00ff00ff
        s_mov_b32 exec_hi, 0x00ff00ff
        global_atomic_add_f32 v9, v64, {sp(P_WS)}
        s_mov_b64 exec, -1
        """)
        if kh == 0:
            a("s_branch L_a2_done")
    a.label("L_a2_done")
    a(f"""
    v_lshrrev_b32 v2, 3, v0
    v_and_b32 v3, 7, v0
    v_mul_u32_u24 v4, {SGS}, v2
    v_lshl_add_u32 v4, v3, 4, v4
    v_add_u32 v4, {SG}, v4
    s_mul_i32 s{T0 + 2}, s{S_HG}, {80 * 4096}
    s_lshl_b32 s{T0 + 3}, s{S_RB}, 7
    s_add_u32 s{T0 + 2}, s{T0 + 2}, s{T0 + 3}
    s_add_u32 s{T0 + 2}, s{T0 + 2}, s{S_BOFF}
    s_add_u32 s{T0 + 2}, s{T0 + 2}, {X1T}
    v_lshl_add_u32 v5, v2, 12, s{T0 + 2}
    v_lshl_add_u32 v5, v3, 4, v5
    v_add_u32 v8, {64 * 4096}, v5
    s_waitcnt lgkmcnt(0)
    s_barrier
    ds_read_b128 v[20:23], v4
    ds_read_b128 v[24:27], v4 offset:{64 * SGS}
    s_waitcnt lgkmcnt(1)
    global_store_dwordx4 v5, v[20:23], {sp(P_WS)} sc1
    s_cmp_ge_u32 s{S_WAVE}, 2
    s_cbranch_scc1 L_a2_st
    s_waitcnt lgkmcnt(0)
    global_store_dwordx4 v8, v[24:27], {sp(P_WS)} sc1
    """)
    a.label("L_a2_st")


def tap_table_loads(a):
    a(f"""
    s_getpc_b64 {sp(T0 + 8)}
    """)
    a.label("L_tbref")
    a(f"""
    s_add_u32 s{T0 + 8}, s{T0 + 8}, L_tab1-L_tbref
    s_addc_u32 s{T0 + 9}, s{T0 + 9}, 0
    v_lshlrev_b32 v70, 1, v0
    v_lshlrev_b32 v71, 2, v0
    v_and_b32 v72, 0x7e, v70
    global_load_ushort v80, v70, {sp(T0 + 8)}
    global_load_ushort v81, v70, {sp(T0 + 8)} offset:1024
    global_load_ushort v82, v72, {sp(T0 + 8)} offset:2048
    global_load_dword v83, v71, {sp(T0 + 8)} offset:2176
    v_add_u32 v71, 2048, v71
    global_load_dword v84, v71, {sp(T0 + 8)} offset:2176
    """)


def tap_build(a):
    VA = 16
    for k in range(3):
        for ch in range(3):
            for t in range(3):
                a(f"ds_read_b32 v{VA + 9 * k + 3 * ch + t}, v{80 + k} offset:{R_T + (3 * ch + t) * UB}")
        if k < 2:
            a(f"s_waitcnt lgkmcnt({6})")
    a(f"""
    v_lshlrev_b32 v70, 1, v0
    v_and_b32 v72, 0x7e, v70
    v_add_u32 v70, {LIN}, v70
    v_add_u32 v72, {LIN + 2048}, v72
    v_mov_b32 v73, {L_MAX}
    s_waitcnt lgkmcnt(0)
    """)
    V = lambda k, ch: VA + 9 * k + 3 * ch
    for t in (1, 2):
        for k in range(3):
            for ch in range(3):
                a(f"v_add_f32 v{V(k, ch)}, v{V(k, ch)}, v{V(k, ch) + t}")
    for ch in range(3):
        a(f"v_max3_f32 v{48 + ch}, abs(v{V(0, ch)}), abs(v{V(1, ch)}), abs(v{V(2, ch)})")
    for sh in (1, 2, 4, 8):
        for ch in range(3):
            a(f"v_max_f32_dpp v{48 + ch}, v{48 + ch}, v{48 + ch} row_ror:{sh} row_mask:0xf bank_mask:0xf")
    a("s_mov_b32 exec_lo, 0x00010001")
    a("s_mov_b32 exec_hi, 0x00010001")
    for ch in range(3):
        a(f"ds_max_f32 v73, v{48 + ch} offset:{4 * ch}")
    a(f"""
    s_mov_b64 exec, -1
    s_waitcnt lgkmcnt(0)
    s_barrier
    ds_read_b128 v[52:55], v73
    v_and_b32 v74, 0xffff, v83
    v_lshrrev_b32 v75, 16, v83
    v_and_b32 v76, 0xffff, v84
    v_lshrrev_b32 v77, 16, v84
    v_add_u32 v74, {LIN}, v74
    v_add_u32 v76, {LIN}, v76
    s_waitcnt lgkmcnt(0)
    """)
    for ch in range(3):
        a(f"v_frexp_exp_i32_f32 v{52 + ch}, v{52 + ch}")
    for ch in range(3):
        a(f"v_sub_u32 v{48 + ch}, 14, v{52 + ch}")
        a(f"v_subrev_u32 v{52 + ch}, 22, v{52 + ch}")
    for ch in range(3):
        a(f"v_ldexp_f32 v{52 + ch}, 1.0, v{52 + ch}")
    for k in range(3):
        for ch in range(3):
            a(f"v_ldexp_f32 v{V(k, ch)}, v{V(k, ch)}, v{48 + ch}")
    for k in range(3):
        for ch in range(3):
            a(f"v_cvt_f16_f32 v{V(k, ch)}, v{V(k, ch)}")
    a(f"ds_write_b128 v73, v[52:55] offset:16")
    for k in range(3):
        for ch in range(3):
            ad, o = (70, 1024 * k) if k < 2 else (72, 0)
            a(f"ds_write_b16 v{ad}, v{V(k, ch)} offset:{o + 2 * LINB * ch}")
            a(f"ds_write_b16 v{ad}, v{V(k, ch)} offset:{o + 2 * LINB * ch + LINB + 2}")
    for ch in (1, 2):
        a(f"v_add_u32 v{56 + 2 * ch}, {2 * LINB * ch}, v74")
        a(f"v_add_u32 v{57 + 2 * ch}, {2 * LINB * ch}, v76")
    a(f"""
    s_waitcnt lgkmcnt(0)
    s_barrier
    """)
    for ch in range(3):
        for c in range(2):
            ad = (74 + 2 * c) if ch == 0 else 56 + 2 * ch + c
            d = 16 + 8 * ch + 4 * c
            a(f"ds_read2_b32 v[{d}:{d + 1}], v{ad} offset0:0 offset1:1")
            a(f"ds_read2_b32 v[{d + 2}:{d + 3}], v{ad} offset0:2 offset1:3")
    for ch in range(3):
        a(f"s_waitcnt lgkmcnt({8 - 4 * ch})")
        for c in range(2):
            d = 16 + 8 * ch + 4 * c
            a(f"ds_write_b128 v{75 + 2 * c}, {vq(d)} offset:{R_T + TAP_CH * ch}")
        if ch < 2:
            pass
    a("s_waitcnt lgkmcnt(0)")
    a("s_barrier")


PROGS = {1: [0, 1, 2, 3], 2: [4, 5], 3: [6, 7]}


def conv_prog(a, P):
    J = PROGS[P]
    AC, X1R, RG, NRG, EU = 16, 32, 40, 12, 88
    TN, T9, T4, DN, D5, D9 = 2, 3, 4, 5, 6, 7
    ops = []
    for kind, keys in (("near", range(18)), ("g5", (2, 3, 4)), ("g3", (2, 3, 4)), ("g9", (64, 80, 96, 112)), ("g7", (64, 80, 96, 112))):
        for ti in keys:
            for j in J:
                for k2, t2, di in conv_steps(j):
                    if k2 == kind and t2 == ti:
                        ops.append((j, kind, ti, di))
    frs, use = [], []
    last = None
    for j, kind, ti, di in ops:
        if last != (kind, ti):
            frs.append(("T", kind, ti))
            tix = len(frs) - 1
            last = (kind, ti)
        frs.append(("D", kind, di))
        use.append((tix, len(frs) - 1))
    lastuse = {}
    for m, (t, d) in enumerate(use):
        lastuse[t] = m
        lastuse[d] = m
    nread = lambda f: 2 if (f[0] == "D" and f[1] != "near") else 1

    def issue(i):
        w, kind, x = frs[i]
        r = RG + 4 * (i % NRG)
        if w == "T":
            if kind == "near":
                a(f"ds_read_b128 {vq(r)}, v{TN} offset:{16 * (68 - 4 * x)}")
            elif kind in ("g9", "g7"):
                a(f"ds_read_b128 {vq(r)}, v{T9} offset:{16 * ((T_G9 if kind == 'g9' else T_G7) + 14 - x // 8)}")
            else:
                a(f"ds_read_b128 {vq(r)}, v{T4} offset:{16 * ((T_G5 if kind == 'g5' else T_G3) + 16 - 4 * x)}")
        elif kind == "near":
            a(f"ds_read_b128 {vq(r)}, v{DN} offset:{64 * x + 448}")
        else:
            base, o, h = {"g5": (D5, D_U5 + 512 * x + 8, 64), "g3": (D5, D_U3 + 512 * x + 16, 64),
                          "g9": (D9, D_U9 + 1024 * x + 8, 128), "g7": (D9, D_U7 + 1024 * x + 24, 128)}[kind]
            a(f"ds_read_b64_tr_b16 v[{r}:{r + 1}], v{base} offset:{o}")
            a(f"ds_read_b64_tr_b16 v[{r + 2}:{r + 3}], v{base} offset:{o + h}")

    issued = 0
    first = set()
    for m, (j, kind, ti, di) in enumerate(ops):
        need = use[m][1]
        while issued < len(frs) and issued < need + 1 + 8 and (issued < NRG or lastuse[issued - NRG] < m) \
                and sum(nread(f) for f in frs[need + 1:issued + 1]) <= 12:
            issue(issued)
            issued += 1
        assert issued > need
        a(f"s_waitcnt lgkmcnt({sum(nread(f) for f in frs[need + 1:issued])})")
        T, D = vq(RG + 4 * (use[m][0] % NRG)), vq(RG + 4 * (need % NRG))
        c = vq(AC + 4 * J.index(j))
        A, B = (T, D) if kind == "near" else (D, T)
        a(f"v_mfma_f32_16x16x32_f16 {c}, {A}, {B}, {c if j in first else 0}")
        first.add(j)
    for i, j in enumerate(J):
        a(f"ds_read_b64 v[{EU + 2 * i}:{EU + 2 * i + 1}], v8 offset:{512 * j}")
    N = range(len(J))
    Y, U = 40, 56
    for i in N:
        for r in range(4):
            a(f"v_mul_f32 v{Y + 4 * i + r}, v{AC + 4 * i + r}, v10")

    def pack(d, s):
        a(f"v_cvt_pk_bf16_f32 v{d}, v{s}, v{s + 1}")
        a(f"v_cvt_pk_bf16_f32 v{d + 1}, v{s + 2}, v{s + 3}")

    def unpack(d, s):
        a(f"""
        v_lshlrev_b32 v{d}, 16, v{s}
        v_and_b32 v{d + 1}, 0xffff0000, v{s}
        v_lshlrev_b32 v{d + 2}, 16, v{s + 1}
        v_and_b32 v{d + 3}, 0xffff0000, v{s + 1}
        """)

    PKD = 72
    for i in N:
        pack(PKD + 2 * i, Y + 4 * i)
    for i in N:
        unpack(Y + 4 * i, PKD + 2 * i)
    a("s_waitcnt vmcnt(0) lgkmcnt(0)")
    for i in N:
        for r in range(4):
            a(f"v_fma_mix_f32 v{U + 4 * i + r}, v{EU + 2 * i + r // 2}, v11, 0 op_sel:[{r % 2},0,0] op_sel_hi:[1,0,0]")
    for i in N:
        pack(PKD + 2 * i, U + 4 * i)
    for i in N:
        unpack(U + 4 * i, PKD + 2 * i)
    for i in N:
        for r in range(4):
            a(f"v_add_f32 v{Y + 4 * i + r}, v{Y + 4 * i + r}, v{U + 4 * i + r}")
    for i in N:
        pack(PKD + 2 * i, Y + 4 * i)
    for i in N:
        unpack(Y + 4 * i, PKD + 2 * i)
        unpack(U + 4 * i, X1R + 2 * i)
    for i in N:
        for r in range(4):
            a(f"v_add_f32 v{Y + 4 * i + r}, v{Y + 4 * i + r}, v{U + 4 * i + r}")
    for i in N:
        pack(PKD + 2 * i, Y + 4 * i)
    add64(a, T0 + 8, P_WS, X2T - X1T)
    for i, j in enumerate(J):
        a(f"global_store_dwordx2 v9, v[{PKD + 2 * i}:{PKD + 2 * i + 1}], {sp(T0 + 8)} offset:{512 * j} sc1")
    a("s_branch L_b_done")


def ln_chunk(a, X, U, MN, RS, TMP):
    F, PKD = TMP, TMP + 8

    def unpack(src):
        for e in range(4):
            a(f"v_lshlrev_b32 v{F + 2 * e}, 16, v{src + e}")
            a(f"v_and_b32 v{F + 2 * e + 1}, 0xffff0000, v{src + e}")

    def pack():
        for e in range(4):
            a(f"v_cvt_pk_bf16_f32 v{PKD + e}, v{F + 2 * e}, v{F + 2 * e + 1}")

    unpack(X)
    for e in range(8):
        a(f"v_sub_f32 v{F + e}, v{F + e}, v{MN + e}")
    pack()
    unpack(PKD)
    a("s_waitcnt lgkmcnt(0)")
    for e in range(8):
        a(f"v_mul_f32 v{F + e}, v{F + e}, v{RS + e}")
    pack()
    unpack(PKD)
    for e in range(4):
        a(f"v_cvt_pk_f16_f32 v{U + e}, v{F + 2 * e}, v{F + 2 * e + 1}")


def box_chunk(a, W, dst):
    O, U3, U5, U7, U9, P = 48, 56, 60, 64, 68, 72
    L = uid("bx")
    for j in range(7):
        a(f"v_alignbyte_b32 v{O + j}, v{W + j + 1}, v{W + j}, 2")
    for q in range(4):
        a(f"v_pk_add_f16 v{P + q}, v{O + 1 + q}, v{O + 2 + q}")
        a(f"v_pk_add_f16 v{U5 + q}, v{W + 1 + q}, v{W + 3 + q}")
    for q in range(4):
        a(f"v_pk_add_f16 v{U3 + q}, v{W + 2 + q}, v{P + q}")
    for q in range(4):
        a(f"v_pk_add_f16 v{U5 + q}, v{U5 + q}, v{U3 + q}")
    a(f"""
    ds_write_b128 v{dst}, {vq(U3)} offset:{D_U3 + 32}
    ds_write_b128 v{dst}, {vq(U5)} offset:{D_U5 + 32}
    s_cmp_ge_u32 s{T0 + 8}, 2
    s_cbranch_scc1 {L}
    """)
    for q in range(4):
        a(f"v_pk_add_f16 v{U7 + q}, v{O + q}, v{O + 3 + q}")
        a(f"v_pk_add_f16 v{U9 + q}, v{W + q}, v{W + 4 + q}")
    for q in range(4):
        a(f"v_pk_add_f16 v{U7 + q}, v{U7 + q}, v{U5 + q}")
    for q in range(4):
        a(f"v_pk_add_f16 v{U9 + q}, v{U9 + q}, v{U7 + q}")
    a(f"""
    ds_write_b128 v{dst}, {vq(U7)} offset:{D_U7 + 32}
    ds_write_b128 v{dst}, {vq(U9)} offset:{D_U9 + 32}
    """)
    a.label(L)


def conv(a):
    a(f"""
    s_and_b32 s{T0 + 2}, s{S_WAVE}, 3
    s_lshr_b32 s{T0 + 3}, s{S_WAVE}, 2
    s_cmp_eq_u32 s{T0 + 2}, 3
    s_cselect_b32 s{T0}, s{T0 + 3}, s{T0 + 2}
    s_add_u32 s{T0 + 1}, s{T0 + 3}, 1
    s_cmp_eq_u32 s{T0 + 2}, 3
    s_cselect_b32 s{T0 + 1}, 3, s{T0 + 1}
    s_cmp_eq_u32 s{T0 + 2}, 2
    s_cbranch_scc0 L_b_role
    s_add_u32 s{T0 + 1}, s{T0 + 1}, s{S_ODD}
    s_cmp_eq_u32 s{T0 + 1}, 2
    s_cselect_b32 s{T0 + 4}, 1, 0
    s_andn2_b32 s{T0 + 4}, s{T0 + 4}, s{S_ODD}
    s_cmp_eq_u32 s{T0 + 4}, 1
    s_cselect_b32 s{T0 + 1}, 0, s{T0 + 1}
    """)
    a.label("L_b_role")
    a(f"""
    s_cmp_eq_u32 s{T0}, 1
    s_cselect_b32 s{T0 + 2}, s{S_CH + 1}, s{S_CH}
    s_cmp_eq_u32 s{T0}, 2
    s_cselect_b32 s{T0 + 2}, s{S_CH + 2}, s{T0 + 2}
    s_mul_i32 s{T0 + 3}, s{T0}, {TAP_CH}
    s_mul_i32 s{T0 + 4}, s{T0}, {DATA_CH}
    s_add_u32 s{T0 + 4}, s{T0 + 4}, {R_X}
    v_and_b32 v14, 15, v1
    v_lshrrev_b32 v15, 4, v1
    v_and_b32 v16, 7, v1
    v_mul_u32_u24 v16, {TS8}, v16
    v_bfe_u32 v17, v1, 3, 1
    v_sub_u32 v16, v16, v17
    v_add3_u32 v3, v16, v15, 1
    v_lshl_add_u32 v3, v3, 4, s{T0 + 3}
    v_and_b32 v17, 1, v15
    v_add3_u32 v16, v16, v17, 3
    v_and_b32 v18, 2, v15
    v_sub_u32 v16, v16, v18
    v_lshl_add_u32 v2, v16, 4, s{T0 + 3}
    v_and_b32 v16, 3, v1
    v_mul_u32_u24 v16, {TS4}, v16
    v_lshrrev_b32 v19, 2, v14
    v_sub_u32 v16, v16, v19
    v_add3_u32 v16, v16, v15, 3
    s_add_u32 s{T0 + 5}, s{T0 + 3}, {T4_BASE}
    v_lshl_add_u32 v4, v16, 4, s{T0 + 5}
    v_lshlrev_b32 v16, 5, v14
    v_lshl_add_u32 v5, v17, 4, v16
    v_lshlrev_b32 v18, 4, v18
    v_sub_u32 v5, v5, v18
    s_add_u32 s{T0 + 5}, s{T0 + 4}, {D_U + 64}
    v_add_u32 v5, s{T0 + 5}, v5
    v_and_b32 v17, 3, v1
    v_lshl_add_u32 v17, v17, 3, s{T0 + 4}
    v_lshl_add_u32 v6, v15, 7, v17
    v_lshl_add_u32 v6, v19, 4, v6
    v_lshl_add_u32 v7, v15, 8, v17
    v_lshl_add_u32 v7, v19, 5, v7
    v_lshl_add_u32 v16, v15, 3, v16
    s_add_u32 s{T0 + 5}, s{T0 + 4}, {D_U + 512}
    v_add_u32 v8, s{T0 + 5}, v16
    s_lshl_b32 s{T0 + 5}, s{T0 + 2}, 12
    s_add_u32 s{T0 + 5}, s{T0 + 5}, s{S_BOFF}
    s_add_u32 s{T0 + 5}, s{T0 + 5}, {X1T}
    v_add_u32 v9, s{T0 + 5}, v16
    s_lshl_b32 s{T0 + 5}, s{T0 + 2}, 1
    v_mov_b32 v12, s{T0 + 5}
    global_load_ushort v11, v12, {sp(P_DS)}
    s_lshl_b32 s{T0 + 5}, s{T0}, 2
    s_add_u32 s{T0 + 5}, s{T0 + 5}, {L_MAX + 16}
    v_mov_b32 v12, s{T0 + 5}
    ds_read_b32 v10, v12
    """)
    a(f"""
    v_and_b32 v16, 255, v0
    v_lshlrev_b32 v17, 4, v16
    s_cmp_ge_u32 s{S_WAVE}, 4
    s_cselect_b32 s{T0 + 5}, s{S_CH + 1}, s{S_CH}
    s_cselect_b32 s{T0 + 6}, {DATA_CH}, 0
    s_add_u32 s{T0 + 6}, s{T0 + 6}, {R_X}
    s_lshl_b32 s{T0 + 5}, s{T0 + 5}, 12
    s_add_u32 s{T0 + 7}, s{S_BOFF}, {X1T}
    s_add_u32 s{T0 + 5}, s{T0 + 5}, s{T0 + 7}
    v_add_u32 v20, s{T0 + 5}, v17
    s_lshl_b32 s{T0 + 5}, s{S_CH + 2}, 12
    s_add_u32 s{T0 + 5}, s{T0 + 5}, s{T0 + 7}
    v_add_u32 v22, s{T0 + 5}, v17
    s_mul_i32 s{T0 + 5}, s{S_LAYER}, {STATS_L}
    s_add_u32 s{T0 + 5}, s{T0 + 5}, {STATS}
    v_lshl_add_u32 v21, v0, 4, s{T0 + 5}
    v_add_u32 v23, 8192, v21
    v_lshlrev_b32 v26, 2, v0
    v_add_u32 v26, {LM}, v26
    v_lshlrev_b32 v27, 3, v0
    v_add_u32 v27, {LR}, v27
    v_add_u32 v14, {LM}, v17
    v_lshlrev_b32 v15, 5, v16
    v_add_u32 v15, {LR}, v15
    v_add_u32 v24, s{T0 + 6}, v17
    v_add_u32 v25, {R_X + 2 * DATA_CH}, v17
    s_cmp_ge_u32 s{S_WAVE}, 3
    s_cbranch_scc1 L_b_nz
    v_mov_b32 v28, 0
    v_mov_b32 v29, 0
    v_mov_b32 v30, 0
    v_mov_b32 v31, 0
    s_mul_i32 s{T0 + 5}, s{S_WAVE}, {DATA_CH}
    s_add_u32 s{T0 + 5}, s{T0 + 5}, {R_X}
    v_and_b32 v16, 31, v1
    v_lshl_add_u32 v16, v16, 4, s{T0 + 5}
    ds_write_b128 v16, v[28:31] offset:{D_U}
    v_bfe_u32 v16, v1, 1, 2
    v_mul_u32_u24 v17, 3104, v16
    v_cmp_eq_u32 vcc, 3, v16
    v_subrev_u32 v18, 1024, v17
    v_cndmask_b32 v17, v17, v18, vcc
    v_and_b32 v16, 1, v1
    v_lshl_add_u32 v17, v16, 4, v17
    v_add_u32 v17, s{T0 + 5}, v17
    ds_write_b128 v17, v[28:31] offset:{D_U5}
    """)
    a.label("L_b_nz")
    a(f"""
    s_cmp_eq_u32 s{S_WAVE}, 0
    s_cbranch_scc0 L_b_np
    s_and_b32 s{T0 + 5}, s2, 7
    s_lshl_b32 s{T0 + 5}, s{T0 + 5}, 12
    s_add_u32 s{T0 + 5}, s{T0 + 5}, s{S_FOFF}
    s_add_u32 s{T0 + 5}, s{T0 + 5}, {FLAGS + ST_U0 * FSTAGE}
    v_and_b32 v16, 31, v1
    v_lshl_add_u32 v16, v16, 7, s{T0 + 5}
    """)
    poll(a, [16], 18)
    a.label("L_b_np")
    a(f"""
    s_waitcnt vmcnt(0) lgkmcnt(0)
    v_lshlrev_b32 v11, 16, v11
    s_barrier
    """)
    stamp_l(a, 15, 14)
    a(f"""
    global_load_dwordx4 v[48:51], v21, {sp(P_WS)} sc1
    global_load_dwordx4 v[52:55], v23, {sp(P_WS)} sc1
    global_load_dwordx4 v[40:43], v20, {sp(P_WS)} sc1
    s_cmp_ge_u32 s{S_WAVE}, 4
    s_cbranch_scc1 L_b_l1
    global_load_dwordx4 v[44:47], v22, {sp(P_WS)} sc1
    """)
    a.label("L_b_l1")
    a(f"""
    s_max_u32 s{T0 + 5}, s{T0 + 1}, 1
    s_lshl_b32 s{T0 + 5}, s{T0 + 5}, 10
    s_cmp_gt_u32 s{T0 + 5}, 1024
    s_cselect_b32 s{T0 + 5}, s{T0 + 5}, 0
    v_add_u32 v12, s{T0 + 5}, v9
    global_load_dwordx2 v[32:33], v12, {sp(P_WS)} sc1
    global_load_dwordx2 v[34:35], v12, {sp(P_WS)} offset:512 sc1
    s_cbranch_scc1 L_b_l2
    global_load_dwordx2 v[36:37], v12, {sp(P_WS)} offset:1024 sc1
    global_load_dwordx2 v[38:39], v12, {sp(P_WS)} offset:1536 sc1
    """)
    a.label("L_b_l2")
    a("s_waitcnt vmcnt(0)")
    stamp_l(a, 16, 14)
    E4 = range(4)
    su, sq = (lambda e: 48 + 2 * e), (lambda e: 49 + 2 * e)
    for e in E4:
        a(f"v_mul_f32 v{su(e)}, 0x3acccccd, v{su(e)}")
        a(f"v_mul_f32 v{sq(e)}, 0x3acccccd, v{sq(e)}")
    for e in E4:
        a(f"v_fma_f32 v{sq(e)}, -v{su(e)}, v{su(e)}, v{sq(e)}")
    for e in E4:
        a(f"v_max_f32 v{sq(e)}, 0, v{sq(e)}")
    a(f"""
    v_cvt_pk_bf16_f32 v56, v48, v50
    v_cvt_pk_bf16_f32 v57, v52, v54
    ds_write_b32 v26, v56
    ds_write_b32 v26, v57 offset:2048
    """)
    for rnd in range(3):
        a(f"""
        v_cvt_pk_bf16_f32 v58, v{49 if rnd == 0 else 60}, v{51 if rnd == 0 else 61}
        v_cvt_pk_bf16_f32 v59, v{53 if rnd == 0 else 62}, v{55 if rnd == 0 else 63}
        v_lshlrev_b32 v60, 16, v58
        v_and_b32 v61, 0xffff0000, v58
        v_lshlrev_b32 v62, 16, v59
        v_and_b32 v63, 0xffff0000, v59
        """)
        for e in E4:
            a([f"v_add_f32 v{60 + e}, 0x3727c5ac, v{60 + e}", f"v_sqrt_f32 v{60 + e}, v{60 + e}", f"v_rcp_f32 v{60 + e}, v{60 + e}"][rnd])
    a(f"""
    ds_write_b64 v27, v[60:61]
    ds_write_b64 v27, v[62:63] offset:4096
    s_waitcnt lgkmcnt(0)
    s_barrier
    ds_read_b128 v[76:79], v14
    ds_read_b128 v[56:59], v15
    ds_read_b128 v[60:63], v15 offset:16
    s_waitcnt lgkmcnt(2)
    """)
    for e in range(4):
        a(f"v_lshlrev_b32 v{48 + 2 * e}, 16, v{76 + e}")
        a(f"v_and_b32 v{49 + 2 * e}, 0xffff0000, v{76 + e}")
    ln_chunk(a, 40, 80, 48, 56, 64)
    a(f"""
    ds_write_b128 v24, v[80:83] offset:{D_U + 512}
    s_cmp_ge_u32 s{S_WAVE}, 4
    s_cbranch_scc1 L_b_u
    """)
    ln_chunk(a, 44, 88, 48, 56, 64)
    a(f"ds_write_b128 v25, v[88:91] offset:{D_U + 512}")
    a.label("L_b_u")
    a(f"""
    s_and_b32 s{T0 + 8}, s{S_WAVE}, 3
    s_waitcnt lgkmcnt(0)
    s_barrier
    s_cmp_eq_u32 s{T0 + 8}, 3
    s_cbranch_scc1 L_b_go
    ds_read_b128 v[76:79], v24 offset:{D_U + 496}
    ds_read_b128 v[84:87], v25 offset:{D_U + 496}
    s_waitcnt lgkmcnt(1)
    """)
    box_chunk(a, 76, 24)
    a(f"""
    s_cmp_ge_u32 s{S_WAVE}, 4
    s_cbranch_scc1 L_b_go
    s_waitcnt lgkmcnt(0)
    """)
    box_chunk(a, 84, 25)
    a.label("L_b_go")
    a(f"""
    s_waitcnt lgkmcnt(0)
    s_barrier
    """)
    stamp_l(a, 17, 14)
    a(f"""
    s_cmp_eq_u32 s{T0 + 1}, 0
    s_cbranch_scc1 L_b_done
    s_cmp_eq_u32 s{T0 + 1}, 2
    s_cbranch_scc1 L_b_p2
    s_cmp_eq_u32 s{T0 + 1}, 3
    s_cbranch_scc1 L_b_p3
    """)
    conv_prog(a, 1)
    a.label("L_b_p2")
    conv_prog(a, 2)
    a.label("L_b_p3")
    conv_prog(a, 3)
    a.label("L_b_done")
    stamp_l(a, 18, 14)


def rest(a, dump_lds):
    post_gemm(a)
    if STOP in ("o", "o1"):
        a(f"s_cmp_eq_u32 s{S_LAYER}, {0 if STOP == 'o' else 1}")
        a("s_cbranch_scc1 L_fin")
    a2(a)
    a(f"""
    s_cmp_eq_u32 s{S_LAYER}, 0
    s_cbranch_scc0 L_u_nt
    """)
    tap_table_loads(a)
    a.label("L_u_nt")
    a(f"""
    s_waitcnt vmcnt(0)
    s_barrier
    s_cmp_eq_u32 s{S_WAVE}, 0
    s_cbranch_scc0 L_u_np
    s_lshl_b32 s{T0}, s{S_HG}, 5
    s_add_u32 s{T0}, s{T0}, s{S_RB}
    s_lshl_b32 s{T0}, s{T0}, 7
    s_add_u32 s{T0}, s{T0}, s{S_FOFF}
    s_add_u32 s{T0}, s{T0}, {FLAGS + ST_U0 * FSTAGE}
    """)
    publish(a, T0, 2, 4)
    a.label("L_u_np")
    stamp_l(a, 14, 14)
    if STOP in ("u", "u1"):
        a(f"s_cmp_eq_u32 s{S_LAYER}, {0 if STOP == 'u' else 1}")
        a("s_cbranch_scc1 L_fin")
    a(f"""
    s_cmp_eq_u32 s{S_LAYER}, 0
    s_cbranch_scc0 L_u_nb
    """)
    tap_build(a)
    if STOP == "taps":
        dump_lds(a, R_T, 49152, DBG)
        a("s_branch L_fin")
    a.label("L_u_nb")
    conv(a)
    a(f"""
    s_waitcnt vmcnt(0)
    s_barrier
    s_cmp_eq_u32 s{S_WAVE}, 0
    s_cbranch_scc0 L_x_np
    s_lshl_b32 s{T0}, s{S_SLOT}, 7
    s_add_u32 s{T0}, s{T0}, s{S_FOFF}
    s_add_u32 s{T0}, s{T0}, {FLAGS + ST_X0 * FSTAGE}
    """)
    publish(a, T0, 2, 4)
    a.label("L_x_np")
    stamp_l(a, 19, 15)
    a(f"""
    s_cmp_eq_u32 s{S_LAYER}, 1
    s_cbranch_scc1 L_final
    """)
    if STOP == "x2":
        a("s_branch L_fin")
    a(f"""
    s_mov_b32 s{S_LAYER}, 1
    s_mov_b32 s{S_FOFF}, {3 * FSTAGE}
    s_mov_b32 s{S_BOFF}, {BUF}
    """)
    g_a1.a1_addresses(a, False)
    g_a1.x2_patterns(a)
    a(f"""
    s_cmp_eq_u32 s{S_WAVE}, 0
    s_cbranch_scc0 L_x_go
    v_lshlrev_b32 v32, 7, v1
    v_add_u32 v32, {FLAGS + ST_X0 * FSTAGE}, v32
    v_add_u32 v33, 8192, v32
    v_add_u32 v34, 16384, v32
    v_add_u32 v35, 24576, v32
    """)
    poll(a, [32, 33, 34, 35], 36)
    a.label("L_x_go")
    a("s_barrier")
    stamp(a, 33)
    for i in range(g_a1.XPRE):
        g_a1.x2_round(a, i)
    if os.environ.get("GST"):
        stamp(a, 12)
    g_a1.gemm_all(a, False)
    final(a)


def final(a):
    a.label("L_final")
    a(f"""
    s_cmp_ge_u32 s2, 160
    s_cbranch_scc1 L_fin
    s_mul_i32 s{T0}, s2, 205
    s_lshr_b32 s{T0}, s{T0}, 11
    s_mul_i32 s{T0 + 1}, s{T0}, 10
    s_sub_u32 s{T0 + 1}, s2, s{T0 + 1}
    s_lshl_b32 s{T0 + 2}, s{T0 + 1}, 18
    s_lshl_b32 s{T0 + 3}, s{T0}, 8
    s_add_u32 s{T0 + 2}, s{T0 + 2}, s{T0 + 3}
    s_lshl_b32 s{T0 + 3}, s{S_WAVE}, 15
    s_add_u32 s{T0 + 2}, s{T0 + 2}, s{T0 + 3}
    s_add_u32 s{T0 + 2}, s{T0 + 2}, {X2T + BUF}
    v_and_b32 v2, 15, v1
    v_lshrrev_b32 v3, 4, v1
    v_lshlrev_b32 v4, 12, v3
    v_lshl_add_u32 v4, v2, 4, v4
    v_add_u32 v4, s{T0 + 2}, v4
    v_add_u32 v5, 16384, v4
    s_lshl_b32 s{T0 + 2}, s{S_WAVE}, 5
    s_add_u32 s{T0 + 2}, s{T0 + 2}, {R_X}
    v_lshrrev_b32 v6, 2, v2
    v_lshl_add_u32 v6, v3, 3, v6
    v_lshlrev_b32 v6, 8, v6
    v_and_b32 v7, 3, v1
    v_lshl_add_u32 v6, v7, 3, v6
    v_add_u32 v6, s{T0 + 2}, v6
    s_lshl_b32 s{T0 + 2}, s{T0}, 3
    s_add_u32 s{T0 + 2}, s{T0 + 2}, s{S_WAVE}
    s_mul_i32 s{T0 + 2}, s{T0 + 2}, {16 * 1280}
    s_lshl_b32 s{T0 + 3}, s{T0 + 1}, 7
    s_add_u32 s{T0 + 2}, s{T0 + 2}, s{T0 + 3}
    v_mul_u32_u24 v7, 1280, v2
    v_lshl_add_u32 v7, v3, 4, v7
    v_add_u32 v7, s{T0 + 2}, v7
    s_lshl_b32 s{T0 + 4}, s{S_WAVE}, 11
    s_cmp_eq_u32 s{S_WAVE}, 0
    s_cbranch_scc0 L_f_go
    s_mul_i32 s{T0 + 2}, s{T0 + 1}, {64 * 205}
    s_lshr_b32 s{T0 + 2}, s{T0 + 2}, 10
    s_lshl_b32 s{T0 + 2}, s{T0 + 2}, 1
    v_min_u32 v8, 27, v1
    v_add_u32 v8, s{T0 + 2}, v8
    v_min_u32 v8, 255, v8
    v_lshlrev_b32 v8, 7, v8
    v_add_u32 v8, {FLAGS + ST_X1 * FSTAGE}, v8
    """)
    poll(a, [8], 10)
    a.label("L_f_go")
    a(f"""
    s_barrier
    s_add_u32 m0, s{T0 + 4}, {R_X}
    s_nop 0
    global_load_lds_dwordx4 v4, {sp(P_WS)} sc1
    s_add_u32 m0, s{T0 + 4}, {R_X + 1024}
    s_nop 0
    global_load_lds_dwordx4 v5, {sp(P_WS)} sc1
    s_waitcnt vmcnt(0)
    s_barrier
    ds_read_b64_tr_b16 v[8:9], v6
    ds_read_b64_tr_b16 v[10:11], v6 offset:1024
    ds_read_b64_tr_b16 v[12:13], v6 offset:8192
    ds_read_b64_tr_b16 v[14:15], v6 offset:9216
    s_waitcnt lgkmcnt(2)
    global_store_dwordx4 v7, v[8:11], {sp(P_OUT)}
    s_waitcnt lgkmcnt(0)
    global_store_dwordx4 v7, v[12:15], {sp(P_OUT)} offset:64
    """)
    stamp(a, 35)
```

```python
from mcommon import *
import struct

fbits = lambda x: struct.unpack("<I", struct.pack("<f", float(x)))[0]

PR = 240
PK = 192
XP = [int(v) for v in os.environ.get('XP', '5,12,20').split(',')]


MAPS = {
    "84": f"""s_and_b32 s{S_SK}, s{T0 + 1}, 3
    s_lshl_b32 s{S_RB}, s{T0}, 2
    s_add_u32 s{S_RB}, s{S_RB}, s{S_SK}
    s_lshr_b32 s{S_HG}, s{T0 + 1}, 2""",
    "48": f"""s_and_b32 s{S_SK}, s{T0 + 1}, 3
    s_lshr_b32 s{S_RB}, s{T0}, 1
    s_lshl_b32 s{S_RB}, s{S_RB}, 3
    s_and_b32 s{S_HG}, s{T0 + 1}, 7
    s_add_u32 s{S_RB}, s{S_RB}, s{S_HG}
    s_and_b32 s{S_HG}, s{T0}, 1
    s_lshl_b32 s{S_HG}, s{S_HG}, 2
    s_lshr_b32 s{T0 + 2}, s{T0 + 1}, 3
    s_add_u32 s{S_HG}, s{S_HG}, s{T0 + 2}""",
}


def entry(a):
    if PROFILE:
        a("s_memrealtime s[100:101]")
    a(f"""
    s_cmp_ge_u32 s2, 256
    s_cbranch_scc1 L_end
    s_load_dwordx16 s[8:23], s[0:1], 0
    s_load_dwordx8 s[24:31], s[0:1], 64
    s_load_dwordx2 s[32:33], s[0:1], 96
    v_lshrrev_b32 v2, 6, v0
    v_and_b32 v1, 63, v0
    v_readfirstlane_b32 s{S_WAVE}, v2
    s_getpc_b64 {sp(T0 + 8)}
    """)
    a.label("L_pcref")
    if os.environ.get("NOPF") is None:
        a(f"""
        s_lshr_b32 s{T0 + 5}, s2, 3
        s_cmp_eq_u32 s{S_WAVE}, 7
        s_cbranch_scc0 L_nopf
        v_and_b32 v2, 31, v1
        v_lshl_add_u32 v2, v2, 5, s{T0 + 5}
        v_lshlrev_b32 v2, 7, v2
        v_min_u32 v2, L_code_end-L_pcref-4, v2
        global_load_dword v250, v2, {sp(T0 + 8)}
        """)
        a.label("L_nopf")
    a(f"""
    s_and_b32 s{T0}, s2, 7
    s_lshr_b32 s{T0 + 1}, s2, 3
    {MAPS[os.environ.get("MAP", "48")]}
    s_and_b32 s{S_ODD}, s{T0 + 1}, 1
    s_lshr_b32 s{T0 + 1}, s{T0 + 1}, 1
    s_lshl_b32 s{T0}, s{T0}, 4
    s_add_u32 s{T0}, s{T0}, s{T0 + 1}
    s_mul_i32 s{T0}, s{T0}, 5
    s_mul_i32 s{T0 + 1}, s{S_ODD}, 3
    s_add_u32 s{S_CH}, s{T0}, s{T0 + 1}
    s_add_u32 s{S_CH + 1}, s{S_CH}, 1
    s_add_u32 s{S_CH + 2}, s{T0}, 2
    s_mov_b32 s{S_LAYER}, 0
    s_mov_b32 s{S_FOFF}, 0
    s_mov_b32 s{S_BOFF}, 0
    """)


UB = 4608
RS_ = 288


def ssm_unit(a, s_blk, hooks={}):
    PW, T, CV, BF, ACC = 4, 16, 52, 68, 84
    W1, W8, W128, W256, W512, W1024 = (PW + 2 * i for i in range(6))

    def hook(k):
        if k in hooks:
            hooks[k]()
            a(f"s_mov_b32 m0, s{s_blk}")

    a(f"""
    v_lshlrev_b32 v{CV}, 16, v{PR}
    v_lshlrev_b32 v{CV + 4}, 16, v{PR + 4}
    v_mul_f32 v{CV}, {LOG2E}, v{CV}
    v_mul_f32 v{CV + 4}, {LOG2E}, v{CV + 4}
    v_exp_f32 v{CV}, v{CV}
    v_exp_f32 v{CV + 4}, v{CV + 4}
    v_lshlrev_b32 v{CV + 1}, 16, v{PR + 1}
    v_lshlrev_b32 v{CV + 2}, 16, v{PR + 2}
    v_lshlrev_b32 v{CV + 3}, 16, v{PR + 3}
    v_cvt_pk_bf16_f32 v{CV}, v{CV}, v{CV + 4}
    v_and_b32 v3, 15, v1
    v_mul_u32_u24 v3, {RS_}, v3
    v_and_b32 v2, 0x30, v1
    v_add3_u32 v3, v3, v2, s{s_blk}
    s_mov_b32 m0, s{s_blk}
    v_and_b32 v{CV + 4}, 0xffff0000, v{CV}
    v_lshlrev_b32 v{CV}, 16, v{CV}
    v_mul_f32 v{CV}, v{CV}, v{CV + 4}
    v_mul_f32 v{CV + 1}, v{CV + 1}, v{CV + 4}
    v_mul_f32 v{ACC}, v{CV + 2}, v{CV + 4}
    v_mul_f32 v{ACC + 1}, v{CV + 3}, v{CV + 4}
    v_mul_f32 v{CV}, {LOG2E ^ 0x80000000}, v{CV}
    v_mul_f32 v{CV + 1}, {INV2PI}, v{CV + 1}
    v_mul_f32 v{ACC}, 0x44000000, v{ACC}
    v_mul_f32 v{ACC + 1}, 0x44000000, v{ACC + 1}
    """)
    POW = [1, 8, 128, 256, 512, 1024]
    M, PH = CV + 2, CV + 8
    for q, pw in enumerate(POW):
        a(f"v_mul_f32 v{M + q}, {fbits(pw)}, v{CV}")
        a(f"v_mul_f32 v{PH + q}, {fbits(pw)}, v{CV + 1}")
    for q in range(6):
        a(f"v_exp_f32 v{M + q}, v{M + q}")
        a(f"v_fract_f32 v{PH + q}, v{PH + q}")
    for q in range(6):
        a(f"v_cos_f32 v{PW + 2 * q}, v{PH + q}")
        a(f"v_sin_f32 v{PW + 2 * q + 1}, v{PH + q}")
    for q in range(6):
        a(f"v_mul_f32 v{PW + 2 * q}, v{PW + 2 * q}, v{M + q}")
        a(f"v_mul_f32 v{PW + 2 * q + 1}, v{PW + 2 * q + 1}, v{M + q}")
    hook(0)

    def cmul(d, z, w):
        return [f"v_pk_mul_f32 v[{d}:{d + 1}], v[{z}:{z + 1}], v[{w}:{w + 1}] op_sel:[0,0] op_sel_hi:[1,0]",
                f"v_pk_fma_f32 v[{d}:{d + 1}], v[{z}:{z + 1}], v[{w}:{w + 1}], v[{d}:{d + 1}] op_sel:[1,1,0] op_sel_hi:[0,1,1] neg_lo:[1,0,0]"]

    def par(seqs):
        for i in range(2):
            for s in seqs:
                a(s[i])

    def table(regs, neg_im):
        n = "-" if neg_im else ""
        for i, r in enumerate(regs):
            a(f"v_cvt_pk_f16_f32 v{CV + i}, v{r}, {n}v{r + 1}")
        for i, r in enumerate(regs):
            a(f"ds_write_addtid_b32 v{CV + i} offset:{RS_ * i}")

    def frags(dst):
        a("s_waitcnt lgkmcnt(0)")
        for ks in range(4):
            a(f"ds_read_b128 {vq(dst + 4 * ks)}, v3 offset:{64 * ks}")

    E = lambda j: T + 2 * j
    a(f"""
    v_mov_b32 v{E(0)}, 1.0
    v_mov_b32 v{E(0) + 1}, 0
    v_mov_b32 v{E(1)}, v{W8}
    v_mov_b32 v{E(1) + 1}, v{W8 + 1}
    """)
    V2, V4 = T + 32, T + 34
    par([cmul(E(2), W8, W8), cmul(V2, W1, W1)])
    par([cmul(E(3), E(2), W8), cmul(E(4), E(2), E(2)), cmul(V4, V2, V2)])
    par([cmul(E(j), E(j - 4), E(4)) for j in (5, 6, 7, 8)])
    par([cmul(E(j), E(j - 4), E(4)) for j in (9, 10, 11, 12)])
    par([cmul(E(j), E(j - 4), E(4)) for j in (13, 14, 15)])
    table([E(j) for j in range(16)], True)
    X = lambda i: T + 2 * i
    a(f"v_mov_b32 v{X(0)}, v{ACC}")
    a(f"v_mov_b32 v{X(0) + 1}, v{ACC + 1}")
    par([cmul(X(1), X(0), W1), cmul(X(2), X(0), V2), cmul(X(4), X(0), V4), cmul(X(8), X(0), W128)])
    frags(BF)
    par([cmul(X(3), X(1), V2), cmul(X(5), X(1), V4), cmul(X(6), X(2), V4), cmul(X(9), X(1), W128), cmul(X(10), X(2), W128), cmul(X(12), X(4), W128)])
    par([cmul(X(7), X(3), V4), cmul(X(11), X(3), W128), cmul(X(13), X(5), W128), cmul(X(14), X(6), W128)])
    par([cmul(X(15), X(7), W128)])
    hook(1)
    a("s_waitcnt lgkmcnt(0)")
    table([X(i) for i in range(16)], False)

    def mm(tau):
        for ks in range(4):
            c = vq(ACC + 4 * tau)
            a(f"v_mfma_f32_16x16x32_f16 {c}, {vq(CV + 4 * ks)}, {vq(BF + 4 * ks)}, {c if ks else 0}")

    src1 = [0, 2, 4, 6, 8, 10, 12, 14]
    dst1 = [1, 3, 5, 7, 9, 11, 13, 15]
    par([cmul(X(d), X(s), W256) for s, d in zip(src1, dst1)])
    frags(CV)
    par([cmul(X(d), X(s), W512) for s, d in zip([0, 4, 8, 12], [2, 6, 10, 14])])
    par([cmul(X(d), X(s), W256) for s, d in zip([2, 6, 10, 14], [4, 12, 16, 17])])
    hook(2)
    a("s_waitcnt lgkmcnt(0)")
    mm(0)
    table([X(i) for i in dst1 + [2, 6, 10, 14, 4, 12, 16, 17]], False)
    par([cmul(X(1), X(0), W1024), cmul(X(3), X(8), W1024)])
    frags(CV)
    par([cmul(X(5), X(1), W256), cmul(X(7), X(3), W256), cmul(X(9), X(1), W512), cmul(X(11), X(3), W512), cmul(X(2), X(1), W1024)])
    par([cmul(X(13), X(9), W256), cmul(X(15), X(11), W256)])
    hook(3)
    a("s_waitcnt lgkmcnt(0)")
    mm(1)
    table([X(i) for i in (1, 3, 5, 7, 9, 11, 13, 15, 2)], False)
    frags(CV)
    a(f"""
    v_lshl_add_u32 v2, v1, 4, s{s_blk}
    v_mov_b32 v4, 0
    s_waitcnt lgkmcnt(0)
    """)
    mm(2)
    a(f"""
    ds_write_b128 v2, {vq(ACC)}
    ds_write_b128 v2, {vq(ACC + 4)} offset:1024
    ds_write_addtid_b32 v4 offset:3072
    ds_write_b128 v2, {vq(ACC + 8)} offset:2048
    """)


COLB = [0, 2, 4, 40, 41, 43, 80, 82, 84]
TILE = [0, 2, 6, 7, 4, 8, 10, 12, 14]
C_COL = sum(v << (7 * i) for i, v in enumerate(COLB))
C_TIL = sum(v << (4 * i) for i, v in enumerate(TILE))


def pack_decode(a, i):
    SG, RO, A = T0 + 10 + i, T0 + 8 + i, 24 + 4 * i
    a(f"""
    s_add_u32 s{T0 + 7}, s{T0 + 3}, {i}
    s_mul_i32 s{T0 + 4}, s{T0 + 7}, 46604
    s_lshr_b32 s{T0 + 4}, s{T0 + 4}, 23
    s_mul_i32 s{T0 + 5}, s{T0 + 4}, 180
    s_sub_u32 s{T0 + 5}, s{T0 + 7}, s{T0 + 5}
    s_mul_i32 s{T0 + 6}, s{T0 + 5}, 57
    s_lshr_b32 s{T0 + 6}, s{T0 + 6}, 9
    s_mul_i32 s{T0 + 7}, s{T0 + 6}, 9
    s_sub_u32 s{T0 + 7}, s{T0 + 5}, s{T0 + 7}
    s_mov_b32 s{T0 + 12}, {C_COL & 0xffffffff}
    s_mov_b32 s{T0 + 13}, {C_COL >> 32}
    s_mul_i32 s{T0 + 5}, s{T0 + 7}, 7
    s_lshr_b64 {sp(T0 + 12)}, {sp(T0 + 12)}, s{T0 + 5}
    s_and_b32 s{T0 + 5}, s{T0 + 12}, 127
    s_lshl_b32 s{T0 + 5}, s{T0 + 5}, 5
    s_mul_i32 s{T0 + 12}, s{T0 + 4}, 160
    s_add_u32 s{T0 + 5}, s{T0 + 5}, s{T0 + 12}
    s_mul_i32 s{T0 + 12}, s{T0 + 6}, {32 * 3840}
    s_add_u32 s{RO}, s{T0 + 5}, s{T0 + 12}
    s_lshr_b32 s{SG}, 0x10c, s{T0 + 7}
    s_and_b32 s{SG}, s{SG}, 1
    s_cselect_b32 s{T0 + 5}, 1, 2
    s_cselect_b32 s{T0 + 12}, 14, 15
    v_and_b32 v{A}, s{T0 + 12}, v4
    v_lshlrev_b32 v{A}, s{T0 + 5}, v{A}
    v_add_u32 v{A}, v{A}, v5
    v_add_u32 v{A + 1}, {2 * 3840}, v{A}
    v_add_u32 v{A + 2}, {4 * 3840}, v{A}
    v_add_u32 v{A + 3}, {6 * 3840}, v{A}
    s_mov_b32 s{T0 + 12}, {C_TIL & 0xffffffff}
    s_mov_b32 s{T0 + 13}, {C_TIL >> 32}
    s_lshl_b32 s{T0 + 5}, s{T0 + 7}, 2
    s_lshr_b64 {sp(T0 + 12)}, {sp(T0 + 12)}, s{T0 + 5}
    s_and_b32 s{T0 + 5}, s{T0 + 12}, 15
    s_mul_i32 s{T0 + 12}, s{T0 + 4}, 15
    s_add_u32 s{T0 + 5}, s{T0 + 5}, s{T0 + 12}
    s_mul_i32 s{T0 + 5}, s{T0 + 5}, 20
    s_add_u32 s{T0 + 5}, s{T0 + 5}, s{T0 + 6}
    s_lshl_b32 s{T0 + 5}, s{T0 + 5}, 10
    s_add_u32 s{T0 + 5}, s{T0 + 5}, {WP}
    v_lshl_add_u32 v{10 + 2 * i}, v1, 4, s{T0 + 5}
    v_add_u32 v{11 + 2 * i}, 20480, v{10 + 2 * i}
    v_and_b32 v{14 + i}, s{SG}, v1
    v_mul_u32_u24 v{14 + i}, 0x020202, v{14 + i}
    v_lshl_or_b32 v{14 + i}, v{14 + i}, 8, v{14 + i}
    v_add_u32 v{14 + i}, 0x05040100, v{14 + i}
    """)


def pack_loads(a, i):
    R, A = PK + 16 * i, 24 + 4 * i
    add64(a, T0 + 12, P_WQ, f"s{T0 + 8 + i}")
    for e in range(8):
        a(f"global_load_dword v{R + e}, v{A + e // 2}, {sp(T0 + 12)} offset:{3840 * (e % 2)}")


def param_addr(a, s_ch, s_third):
    a(f"""
    s_mul_i32 s{T0 + 12}, s{s_ch}, 384
    s_lshl_b32 s{T0 + 13}, s{s_third}, 7
    s_add_u32 s{T0 + 12}, s{T0 + 12}, s{T0 + 13}
    v_lshl_add_u32 v2, v1, 1, s{T0 + 12}
    s_lshl_b32 s{T0 + 13}, s{s_ch}, 1
    v_mov_b32 v3, s{T0 + 13}
    """)


def param_loads(a):
    a(f"""
    global_load_ushort v{PR}, v2, {sp(P_LA)}
    global_load_ushort v{PR + 4}, v3, {sp(P_LD)}
    global_load_ushort v{PR + 1}, v2, {sp(P_AI)}
    global_load_ushort v{PR + 2}, v2, {sp(P_CR)}
    global_load_ushort v{PR + 3}, v2, {sp(P_CI)}
    """)


XB = 246


def x_dma(a, i0, i1):
    Ld = uid("xd")
    a(f"""
    s_sub_u32 s{T0 + 6}, s{S_WAVE}, 3
    s_lshl_b32 s{T0 + 6}, s{T0 + 6}, 10
    s_mul_i32 s{T0 + 7}, s{S_RB}, {16 * 5120}
    s_max_u32 s{T0 + 5}, s{T0 + 7}, {4 * 5120}
    s_and_b32 s{T0 + 10}, s{S_HG}, 3
    """)
    for h in range(1, 4):
        a(f"s_cmp_eq_u32 s{T0 + 10}, {h}")
        a(f"s_cbranch_scc1 {Ld}_{h}")
    for h in range(4):
        if h:
            a.label(f"{Ld}_{h}")
        prev = None
        for i in range(i0, i1):
            z = (i + 5 * h) % 20
            a(f"s_add_u32 m0, s{T0 + 6}, {R_X + z * 5120}")
            if prev is None or z != prev + 1 or z == 4:
                a(f"s_add_u32 s{T0 + 10}, s{T0 + 5 if z < 4 else T0 + 7}, {(z - 4) * 5120}")
                add64(a, T0 + 8, P_X, f"s{T0 + 10}")
            else:
                add64(a, T0 + 8, T0 + 8, 5120)
            a(f"global_load_lds_dwordx4 v{XB + z % 4}, {sp(T0 + 8)}")
            prev = z
        if h < 3:
            a(f"s_branch {Ld}")
    a.label(Ld)


def start(a, pre_w):
    entry(a)
    a(f"""
    s_mul_i32 s{T0}, s{S_WAVE}, 11
    s_lshr_b32 s{T0}, s{T0}, 5
    s_mul_i32 s{T0 + 1}, s{T0}, 3
    s_sub_u32 s{T0 + 1}, s{S_WAVE}, s{T0 + 1}
    s_cmp_eq_u32 s{T0}, 1
    s_cselect_b32 s{T0 + 2}, s{S_CH + 1}, s{S_CH}
    s_cmp_eq_u32 s{T0}, 2
    s_cselect_b32 s{T0 + 2}, s{S_CH + 2}, s{T0 + 2}
    v_mov_b32 v16, 0
    v_mov_b32 v17, 0
    v_mov_b32 v18, 0
    v_mov_b32 v19, 0
    """)
    param_addr(a, T0 + 2, T0 + 1)
    a(f"""
    s_cmp_ge_u32 s{S_WAVE}, 3
    s_cbranch_scc1 L_st_x
    s_min_u32 s{T0 + 3}, s2, 239
    s_mul_i32 s{T0 + 3}, s{T0 + 3}, 6
    s_lshl_b32 s{T0 + 4}, s{S_WAVE}, 1
    s_add_u32 s{T0 + 3}, s{T0 + 3}, s{T0 + 4}
    v_and_b32 v4, 15, v1
    v_lshrrev_b32 v5, 4, v1
    v_mul_u32_u24 v5, {8 * 3840}, v5
    v_mov_b32 v{XB}, 0
    v_mov_b32 v{XB + 1}, 0
    v_mov_b32 v{XB + 2}, 0
    v_mov_b32 v{XB + 3}, 0
    """)
    pack_decode(a, 0)
    pack_decode(a, 1)
    slab_offsets(a, 32, 1280)
    a(f"""
    s_mul_i32 s{T0 + 4}, s2, 2185
    s_lshr_b32 s{T0 + 4}, s{T0 + 4}, 16
    s_mul_i32 s{T0 + 5}, s{T0 + 4}, 30
    s_sub_u32 s{T0 + 5}, s2, s{T0 + 5}
    s_cmp_lt_u32 s{T0 + 5}, 20
    s_cselect_b32 s{T0}, 1, 0
    s_cmp_lt_u32 s2, 240
    s_cselect_b32 s{T0}, s{T0}, 0
    s_cmp_eq_u32 s{S_WAVE}, 1
    s_cselect_b32 s{T0}, s{T0}, 0
    s_mul_i32 s{T0 + 1}, s{T0 + 5}, {32 * 1280}
    s_mul_i32 s{T0 + 6}, s{T0 + 4}, 160
    s_add_u32 s{T0 + 1}, s{T0 + 1}, s{T0 + 6}
    s_mul_i32 s{T0 + 4}, s{T0 + 4}, 102400
    s_mul_i32 s{T0 + 5}, s{T0 + 5}, 5120
    s_add_u32 s{T0 + 4}, s{T0 + 4}, s{T0 + 5}
    s_add_u32 s{T0 + 4}, s{T0 + 4}, {WOP + 1024}
    v_lshl_add_u32 v37, v1, 4, s{T0 + 4}
    """)
    a(f"""
    s_lshl_b32 s{T0 + 4}, s{S_RB}, 9
    s_add_u32 s{T0 + 4}, s{T0 + 4}, {STATS}
    v_and_b32 v6, 31, v1
    v_lshl_add_u32 v6, v6, 4, s{T0 + 4}
    v_lshrrev_b32 v7, 5, v1
    v_lshl_add_u32 v6, v7, 14, v6
    v_and_b32 v8, 3, v1
    v_lshlrev_b32 v8, 4, v8
    v_add_u32 v8, {L_CTR}, v8
    v_mov_b32 v9, {L_MAX}
    ds_write_b128 v8, v[16:19]
    ds_write_b128 v9, v[16:19]
    s_waitcnt lgkmcnt(0)
    """)
    stamp_init(a)
    stamp(a, 0)
    a(f"""
    s_cmp_ge_u32 s2, 240
    s_cbranch_scc1 L_st_nopack
    """)
    pack_loads(a, 0)
    pack_loads(a, 1)
    a(f"""
    s_cmp_eq_u32 s{T0}, 0
    s_cbranch_scc1 L_st_nopack
    """)
    add64(a, T0 + 12, P_WO, f"s{T0 + 1}")
    for e in range(5):
        a(f"global_load_dwordx4 {vq(160 + 4 * e)}, v{32 + e}, {sp(T0 + 12)}")
    a.label("L_st_nopack")
    param_loads(a)
    a(f"""
    global_load_dwordx2 v[20:21], v16, {sp(P_WS)} sc1
    s_cmp_eq_u32 s{S_WAVE}, 2
    s_cbranch_scc0 L_st_b0
    s_cmp_eq_u32 s{S_HG}, 0
    s_cbranch_scc0 L_st_nz
    global_store_dwordx4 v6, v[16:19], {sp(P_WS)} sc1
    """)
    a.label("L_st_nz")
    a(f"""
    s_cmp_eq_u32 s2, 255
    s_cbranch_scc0 L_st_b0
    v_and_b32 v6, 1, v1
    v_lshlrev_b32 v6, 4, v6
    v_add_u32 v6, {X2T - 32}, v6
    s_mov_b64 exec, 3
    global_store_dwordx4 v6, v[16:19], {sp(P_WS)} sc1
    s_mov_b64 exec, -1
    """)
    a.label("L_st_b0")
    a(f"""
    s_barrier
    s_waitcnt vmcnt(0)
    s_cmp_ge_u32 s2, 240
    s_cbranch_scc1 L_st_unit
    s_mov_b32 s{T0 + 8}, 0x07060302
    """)
    for i in range(2):
        R = PK + 16 * i
        for d in range(4):
            a(f"v_perm_b32 v{R + 8 + d}, v{R + 2 * d + 1}, v{R + 2 * d}, v{14 + i}")
        a(f"global_store_dwordx4 v{10 + 2 * i}, {vq(R + 8)}, {sp(P_WS)} sc1")
    for i in range(2):
        R = PK + 16 * i
        a(f"""
        s_cmp_eq_u32 s{T0 + 10 + i}, 1
        s_cbranch_scc1 L_st_sg{i}
        """)
        for d in range(4):
            a(f"v_perm_b32 v{R + 12 + d}, v{R + 2 * d + 1}, v{R + 2 * d}, s{T0 + 8}")
        a(f"global_store_dwordx4 v{11 + 2 * i}, {vq(R + 12)}, {sp(P_WS)} sc1")
        a.label(f"L_st_sg{i}")
    a(f"""
    s_cmp_eq_u32 s{T0}, 0
    s_cbranch_scc1 L_st_unit
    """)
    for e in range(5):
        a(f"global_store_dwordx4 v37, {vq(160 + 4 * e)}, {sp(P_WS)} offset:{1024 * e - 1024} sc1")
    a("s_branch L_st_unit")
    a.label("L_st_x")
    a(f"""
    s_lshl_b32 s{T0 + 4}, s{S_WAVE}, 6
    v_add_u32 v6, s{T0 + 4}, v1
    v_subrev_u32 v6, 192, v6
    v_mul_u32_u24 v7, 205, v6
    v_lshrrev_b32 v7, 14, v7
    v_mul_u32_u24 v8, 80, v7
    v_sub_u32 v8, v6, v8
    v_xor_b32 v8, v8, v7
    v_lshlrev_b32 v8, 4, v8
    v_mul_u32_u24 v7, 1280, v7
    v_add_u32 v7, v7, v8
    s_lshl_b32 s{T0 + 4}, s{S_SK}, 6
    v_xor_b32 v{XB}, s{T0 + 4}, v7
    v_xor_b32 v{XB + 1}, 64, v{XB}
    v_xor_b32 v{XB + 2}, 128, v{XB}
    v_xor_b32 v{XB + 3}, 192, v{XB}
    s_waitcnt lgkmcnt(0)
    """)
    stamp_init(a)
    stamp(a, 0)
    param_loads(a)
    a(f"""
    global_load_dwordx2 v[20:21], v16, {sp(P_WS)} sc1
    s_barrier
    """)
    x_dma(a, 0, XP[0])
    a(f"s_waitcnt vmcnt({XP[0]})")
    a.label("L_st_unit")
    a(f"""
    s_and_b32 s{S_SLOT}, s2, 7
    s_lshl_b32 s{S_SLOT}, s{S_SLOT}, 5
    s_lshr_b32 s{S_SLOT + 1}, s2, 3
    s_add_u32 s{S_SLOT}, s{S_SLOT}, s{S_SLOT + 1}
    v_readfirstlane_b32 s{TAG}, v20
    v_readfirstlane_b32 s{TAG + 1}, v21
    s_add_u32 s{TAG}, s{TAG}, 1
    s_addc_u32 s{TAG + 1}, s{TAG + 1}, 0
    """)
    stamp(a, 1)

    def xpart(k, extra=None):
        def f():
            L = uid("xs")
            a(f"""
            s_cmp_lt_u32 s{S_WAVE}, 3
            s_cbranch_scc1 {L}
            """)
            x_dma(a, XP[k - 1], XP[k])
            if extra:
                extra(L)
            a.label(L)
        return f

    def flag():
        a(f"""
        s_cmp_ge_u32 s{S_WAVE}, 3
        s_cbranch_scc1 L_st_mid
        """)
        stamp(a, 30)
        a("s_waitcnt vmcnt(0)")
        stamp(a, 31)
        lds_last(a, L_CTR, 3, PK, PK + 2)
        a(f"""
        s_cbranch_scc0 L_st_mid
        s_lshl_b32 s{T0 + 8}, s2, 7
        s_add_u32 s{T0 + 8}, s{T0 + 8}, {FLAGS + ST_W * FSTAGE}
        """)
        publish(a, T0 + 8, PK, PK + 4)
        a.label("L_st_mid")

    a(f"""
    s_mul_i32 s{T0 + 4}, s{S_WAVE}, {UB}
    s_add_u32 s{T0 + 4}, s{T0 + 4}, {R_T}
    """)
    ssm_unit(a, T0 + 4, {0: xpart(1), 1: flag, 2: xpart(2)})
    stamp(a, 2)
    a(f"""
    s_cmp_eq_u32 s{S_WAVE}, 0
    s_cbranch_scc0 L_st_np
    s_mul_i32 s{T0 + 4}, s{S_HG}, 30
    v_min_u32 v2, 29, v1
    v_add_u32 v2, s{T0 + 4}, v2
    v_lshlrev_b32 v2, 7, v2
    v_add_u32 v2, {FLAGS + ST_W * FSTAGE}, v2
    """)
    poll(a, [2], 4)
    a(f"""
    v_mov_b32 v2, {L_CTR + 4}
    v_mov_b32 v3, 1
    ds_write_b32 v2, v3
    """)
    a.label("L_st_np")
    pre_w()
    a(f"""
    s_waitcnt vmcnt(0)
    s_sub_u32 s{T0 + 4}, s{S_WAVE}, 3
    s_cmp_lt_u32 s{T0 + 4}, 2
    s_cbranch_scc0 L_st_w
    s_lshl_b32 s{T0 + 4}, s{T0 + 4}, 10
    s_add_u32 s{T0 + 4}, s{T0 + 4}, {R_X}
    v_lshl_add_u32 v24, v1, 4, s{T0 + 4}
    v_min_u32 v24, {R_X + 1264}, v24
    ds_write_b128 v24, v[10:13]
    """)
    a.label("L_st_w")
    stamp(a, 5)
    lds_spin(a, L_CTR + 4, 1, 24, 25)
    stamp(a, 3)
```

```python
import os
from asmlib2 import Asm
from layout import *

PROFILE = bool(int(os.environ.get("PROFILE", "0")))
STOP = os.environ.get("STOP", "")

S_WAVE, S_HG, S_RB, S_SK, S_LAYER = 3, 4, 5, 6, 7
P_X, P_WQ, P_WO = 8, 10, 12
P_LA, P_AI, P_CR, P_CI, P_LD, P_DS, P_OUT, P_DBG, P_WS = 16, 18, 20, 22, 24, 26, 28, 30, 32
TAG = 34
S_ODD = 36
S_CH = 37
S_FOFF = 40
S_BOFF = 41
S_SLOT = 14
T0 = 42
EXS = 58
STP = 60
SPIN_LIMIT = 200000

R_T = 0
R_M = R_T + 3 * TAP_CH
R_X = 61440
L_CTR = R_M
L_ST = R_M + 64
L_CS = L_ST + 640
L_MAX = L_CS + 960
LDS_BYTES = 163840
QS = 496

LOG2E = 0x3fb8aa3b
INV2PI = 0x3e22f983
SCALE = 0x3e64f92e
WREG = 96


def sp(i):
    return f"s[{i}:{i + 1}]"


def vq(i, n=4):
    return f"v[{i}:{i + n - 1}]"


def add64(a, d, s, off):
    a(f"s_add_u32 s{d}, s{s}, {off}")
    a(f"s_addc_u32 s{d + 1}, s{s + 1}, 0")


CLK = "s_memrealtime" if os.environ.get("RT") else "s_memtime"


def stamp(a, i):
    if PROFILE:
        assert i < 36
        a(f"{CLK} s[{STP}:{STP + 1}]")
        a("s_waitcnt lgkmcnt(0)")
        a(f"s_mov_b32 s{62 + i}, s{STP}")


def stamp_l(a, i, stride):
    if PROFILE:
        a(f"{CLK} s[{STP}:{STP + 1}]")
        a("s_waitcnt lgkmcnt(0)")
        a(f"s_cmp_eq_u32 s{S_LAYER}, 0")
        a(f"s_cselect_b32 s{62 + i}, s{STP}, s{62 + i}")
        a(f"s_cselect_b32 s{62 + i + stride}, s{62 + i + stride}, s{STP}")


def stamp_init(a):
    if PROFILE:
        for i in range(36):
            a(f"s_mov_b32 s{62 + i}, 0")
        a("s_memrealtime s[98:99]")
        a("s_waitcnt lgkmcnt(0)")


def stamp_flush(a):
    if not PROFILE:
        return
    a(f"""
    s_mov_b64 exec, -1
    s_lshl_b32 s{T0}, s2, 3
    s_add_u32 s{T0}, s{T0}, s{S_WAVE}
    s_lshl_b32 s{T0}, s{T0}, 8
    s_add_u32 s{T0}, s{T0}, {PROF}
    """)
    add64(a, T0 + 2, P_WS, f"s{T0}")
    a(f"""
    v_mov_b32 v0, 0
    s_memrealtime s[{STP}:{STP + 1}]
    s_waitcnt lgkmcnt(0)
    v_mov_b32 v1, s100
    global_store_dword v0, v1, {sp(T0 + 2)} offset:244
    v_mov_b32 v1, s98
    global_store_dword v0, v1, {sp(T0 + 2)} offset:248
    v_mov_b32 v1, s{STP}
    global_store_dword v0, v1, {sp(T0 + 2)} offset:252
    """)
    for i in range(36):
        a(f"v_mov_b32 v1, s{62 + i}")
        a(f"global_store_dword v0, v1, {sp(T0 + 2)} offset:{4 * i}")


_uid = [0]


def uid(p):
    _uid[0] += 1
    return f"L_{p}{_uid[0]}"


def publish(a, off_expr_sgpr, va, vd):
    a(f"""
    v_lshl_add_u32 v{va}, v1, 4, s{off_expr_sgpr}
    v_mov_b32 v{vd}, s{TAG}
    v_mov_b32 v{vd + 1}, s{TAG + 1}
    v_mov_b32 v{vd + 2}, s{TAG}
    v_mov_b32 v{vd + 3}, s{TAG + 1}
    s_mov_b64 exec, 0xff
    global_store_dwordx4 v{va}, v[{vd}:{vd + 3}], {sp(P_WS)} sc1
    s_mov_b64 exec, -1
    """)


def get_tag(a, va, vd):
    L = uid("tag")
    a(f"""
    v_mov_b32 v{va}, 0
    s_mov_b32 s{T0 + 15}, 0
    """)
    a.label(L)
    a(f"""
    global_load_dwordx2 v[{vd}:{vd + 1}], v{va}, {sp(P_DBG)} sc1
    s_add_u32 s{T0 + 15}, s{T0 + 15}, 1
    s_waitcnt vmcnt(0)
    v_readfirstlane_b32 s{TAG}, v{vd}
    v_readfirstlane_b32 s{TAG + 1}, v{vd + 1}
    s_cmp_gt_u32 s{T0 + 15}, {SPIN_LIMIT}
    s_cbranch_scc1 L_end
    s_cmp_eq_u64 {sp(TAG)}, 0
    s_cbranch_scc1 {L}
    """)


def poll(a, vaddrs, vd):
    L = uid("poll")
    a(f"s_mov_b32 s{T0 + 15}, 0")
    a.label(L)
    for i, va in enumerate(vaddrs):
        a(f"global_load_dwordx2 v[{vd + 2 * i}:{vd + 2 * i + 1}], v{va}, {sp(P_WS)} sc1")
    a(f"s_add_u32 s{T0 + 15}, s{T0 + 15}, 1")
    a("s_waitcnt vmcnt(0)")
    for i in range(len(vaddrs)):
        if i == 0:
            a(f"v_cmp_ne_u64 vcc, {sp(TAG)}, v[{vd}:{vd + 1}]")
        else:
            a(f"v_cmp_ne_u64 {sp(T0 + 12)}, {sp(TAG)}, v[{vd + 2 * i}:{vd + 2 * i + 1}]")
            a(f"s_or_b64 vcc, vcc, {sp(T0 + 12)}")
    a(f"""
    s_cmp_gt_u32 s{T0 + 15}, {SPIN_LIMIT}
    s_cbranch_scc1 L_end
    s_cbranch_vccnz {L}
    """)


def lds_last(a, ctr_off, total, va, vd):
    a(f"""
    v_mov_b32 v{va}, {ctr_off}
    v_mov_b32 v{vd}, 1
    s_mov_b64 exec, 1
    ds_add_rtn_u32 v{vd}, v{va}, v{vd}
    s_waitcnt lgkmcnt(0)
    s_mov_b64 exec, -1
    v_readfirstlane_b32 s{T0 + 14}, v{vd}
    s_cmp_eq_u32 s{T0 + 14}, {total - 1}
    """)


def lds_spin(a, off, want, va, vd):
    L = uid("sp")
    a(f"""
    v_mov_b32 v{va}, {off}
    s_mov_b32 s{T0 + 15}, 0
    """)
    a.label(L)
    a(f"""
    ds_read_b32 v{vd}, v{va}
    s_add_u32 s{T0 + 15}, s{T0 + 15}, 1
    s_waitcnt lgkmcnt(0)
    v_readfirstlane_b32 s{T0 + 14}, v{vd}
    s_cmp_gt_u32 s{T0 + 15}, {SPIN_LIMIT * 10}
    s_cbranch_scc1 L_end
    s_cmp_lt_u32 s{T0 + 14}, {want}
    s_cbranch_scc1 {L}
    """)


def slab_offsets(a, dst, rowbytes):
    for e in range(5):
        a(f"""
        v_add_u32 v{dst + e}, {64 * e}, v1
        v_mul_u32_u24 v{dst + 5}, 205, v{dst + e}
        v_lshrrev_b32 v{dst + 5}, 11, v{dst + 5}
        v_mul_u32_u24 v{dst + 6}, 10, v{dst + 5}
        v_sub_u32 v{dst + e}, v{dst + e}, v{dst + 6}
        v_and_b32 v{dst + 6}, 3, v{dst + 5}
        v_bfe_u32 v{dst + 7}, v{dst + 5}, 2, 2
        v_lshl_or_b32 v{dst + 6}, v{dst + 7}, 3, v{dst + 6}
        v_lshrrev_b32 v{dst + 7}, 4, v{dst + 5}
        v_lshl_or_b32 v{dst + 6}, v{dst + 7}, 2, v{dst + 6}
        v_mul_u32_u24 v{dst + 6}, {rowbytes}, v{dst + 6}
        v_lshl_add_u32 v{dst + e}, v{dst + e}, 4, v{dst + 6}
        """)
```

```python
from mcommon import *
from g_start import UB

XA, XT, RSA, ONES, RES = 2, 6, 7, 10, 10
FR, NFR, ACC = 16, 8, 48
WA = 44

ROLES = {"A": dict(b=(0, 1), q=(0, 1), st=(1,)), "B": dict(b=(0, 1), q=(0, 1), st=(2,)),
         "C": dict(b=(0, 1), q=(), st=()), "D": dict(b=(0, 1), q=(0,), st=(0,)),
         "E": dict(b=(0,), q=(), st=(3, 4))}
WROLE = "ABCDCCCE"


def role_ops(role, L1):
    r = ROLES[role]
    ops, acc = {}, {}
    for mt in range(5):
        l = [("w", b) for b in r["b"] if not (mt == 0 and b in r["q"] and not L1)]
        if mt in r["st"] and not L1:
            l += [("S", 0), ("U", 0)]
        if l:
            ops[mt] = l
    for mt in ops:
        for op in ops[mt]:
            acc[(mt, op)] = ACC + 4 * len(acc)
    assert len(acc) <= 12
    return list(ops), ops, acc


def a1_addresses(a, L1):
    a(f"""
    v_and_b32 v16, 15, v1
    v_lshrrev_b32 v17, 4, v1
    v_lshrrev_b32 v18, 2, v16
    v_and_b32 v19, 3, v1
    s_and_b32 s{T0}, s{S_WAVE}, 3
    s_lshr_b32 s{T0 + 1}, s{S_WAVE}, 2
    s_mul_i32 s{T0 + 1}, s{T0 + 1}, 48
    s_mul_i32 s{T0 + 2}, s{S_HG}, 80
    s_add_u32 s{T0 + 1}, s{T0 + 1}, s{T0 + 2}
    """)
    for r in range(4):
        a(f"v_mov_b32 v{ONES + r}, 0x3f803f80")
    if L1:
        a(f"""
        s_mul_i32 s{T0 + 4}, s{S_HG}, 15
        s_lshl_b32 s{T0 + 5}, s{S_WAVE}, 1
        s_add_u32 s{T0 + 4}, s{T0 + 4}, s{T0 + 5}
        s_mul_i32 s{T0 + 4}, s{T0 + 4}, 20480
        s_add_u32 s{T0 + 4}, s{T0 + 4}, {WP}
        """)
        add64(a, T0 + 6, P_WS, f"s{T0 + 4}")
        add64(a, T0 + 8, T0 + 6, 20480)
        for j in range(4):
            a(f"""
            s_xor_b32 s{T0 + 4}, s{S_SK}, {j}
            s_lshl_b32 s{T0 + 4}, s{T0 + 4}, 10
            v_lshl_add_u32 v{WA + j}, v1, 4, s{T0 + 4}
            """)
        a(f"v_mul_u32_u24 v20, 1280, v16")
        a(f"v_add_u32 v20, {R_X}, v20")
        for j in range(4):
            a(f"""
            v_add_u32 v21, {4 * j}, v17
            v_xor_b32 v21, v21, v16
            v_lshl_add_u32 v{XA + j}, v21, 4, v20
            """)
        a(f"""
        v_lshl_add_u32 v20, v17, 2, v18
        s_lshl_b32 s{T0 + 2}, s{S_SK}, 2
        v_xor_b32 v21, s{T0 + 2}, v20
        s_lshl_b32 s{T0 + 2}, s{T0}, 4
        s_add_u32 s{T0 + 2}, s{T0 + 2}, 16
        v_add_u32 v20, s{T0 + 2}, v20
        v_mul_u32_u24 v20, 1280, v20
        v_add_u32 v20, {R_X}, v20
        v_and_b32 v22, 1, v19
        v_lshl_add_u32 v20, v22, 3, v20
        v_lshrrev_b32 v22, 1, v19
        s_lshr_b32 s{T0 + 2}, s{T0 + 1}, 3
        v_add_u32 v22, s{T0 + 2}, v22
        """)
        for i in range(3):
            a(f"""
            v_add_u32 v23, {2 * i}, v22
            v_min_u32 v23, 79, v23
            v_xor_b32 v23, v23, v21
            v_lshl_add_u32 v{RSA + i}, v23, 4, v20
            """)
    else:
        a(f"""
        v_lshl_add_u32 v20, v17, 2, v18
        v_mul_u32_u24 v20, 160, v20
        v_add_u32 v20, {R_X}, v20
        v_lshl_add_u32 v{XA}, v19, 3, v20
        v_add_u32 v{XA + 1}, {12 * 5120}, v{XA}
        s_lshl_b32 s{T0 + 2}, s{T0}, 5
        s_add_u32 s{T0 + 2}, s{T0 + 2}, {R_X + 32}
        v_lshl_add_u32 v20, v17, 3, s{T0 + 2}
        s_lshl_b32 s{T0 + 2}, s{S_SK}, 5
        """)
        for i in range(3):
            a(f"""
            v_add_u32 v21, {16 * i}, v16
            v_add_u32 v21, s{T0 + 1}, v21
            v_min_u32 v21, 639, v21
            v_xor_b32 v21, s{T0 + 2}, v21
            v_and_b32 v22, 0x3e3, v21
            v_bfe_u32 v23, v21, 3, 2
            v_lshl_or_b32 v22, v23, 2, v22
            v_and_b32 v22, 0x3ef, v22
            v_bfe_u32 v23, v21, 2, 1
            v_lshl_or_b32 v22, v23, 4, v22
            v_mul_u32_u24 v22, 160, v22
            v_add_u32 v{RSA + i}, v22, v20
            """)


DMA_STEPS = eval(os.environ.get('DST', '[(2, 1), (4, 3), (8, 6), (14, 11), (25, 20)]'))
XPAT = [4, 5, 6, 14, 15]
XPRE = int(os.environ.get('XPRE', '8'))
XRATE = int(os.environ.get('XRATE', '2'))


def x2_patterns(a):
    a(f"s_lshl_b32 s{T0 + 2}, s{S_SK}, 5")
    a(f"s_mov_b32 s{T0 + 3}, 52429")
    a(f"v_and_b32 v27, 255, v0")
    for k, d in enumerate(XPAT):
        a(f"""
        v_add_u32 v{d}, {256 * k}, v27
        v_mul_u32_u24 v24, s{T0 + 3}, v{d}
        v_lshrrev_b32 v24, 19, v24
        v_mul_u32_u24 v25, 10, v24
        v_sub_u32 v{d}, v{d}, v25
        v_xor_b32 v24, s{T0 + 2}, v24
        v_and_b32 v25, 0xe3, v24
        v_bfe_u32 v26, v24, 2, 2
        v_lshl_or_b32 v25, v26, 3, v25
        v_bfe_u32 v26, v24, 4, 1
        v_lshl_or_b32 v25, v26, 2, v25
        v_lshlrev_b32 v25, 12, v25
        v_lshl_add_u32 v{d}, v{d}, 4, v25
        """)
    a(f"""
    s_lshl_b32 s{T0}, s{S_RB}, 7
    s_add_u32 s{T0}, s{T0}, {X2T - 32}
    s_and_b32 s{T0 + 10}, s{S_WAVE}, 3
    s_lshl_b32 s{T0 + 10}, s{T0 + 10}, 10
    """)
    add64(a, T0 + 8, P_WS, f"s{T0}")


def x2_round(a, i, prev):
    a(f"s_add_u32 m0, s{T0 + 10}, {R_X + 4096 * i}")
    adv = i // 5 - (prev // 5 if prev is not None else 0)
    if adv:
        add64(a, T0 + 8, T0 + 8, adv * 128 * 4096)
    a(f"global_load_lds_dwordx4 v{XPAT[i % 5]}, {sp(T0 + 8)} sc1")


def x2_first(a):
    a(f"""
    s_cmp_lt_u32 s{S_WAVE}, 4
    s_cbranch_scc1 L_x2lo
    """)
    for par in range(2):
        if par:
            a.label("L_x2lo")
        prev = None
        for i in range(par, XPRE, 2):
            x2_round(a, i, prev)
            prev = i
        if not par:
            a("s_branch L_x2j")
    a.label("L_x2j")


def stat_masks(a):
    a(f"""
    v_and_b32 v18, 3, v1
    v_lshrrev_b32 v19, 2, v16
    v_cmp_eq_u32 {sp(T0)}, 1, v18
    v_cmp_eq_u32 {sp(T0 + 2)}, 2, v18
    v_cmp_eq_u32 {sp(T0 + 4)}, 3, v18
    v_cmp_eq_u32 {sp(T0 + 12)}, v19, v17
    v_lshlrev_b32 v18, 3, v16
    v_add_u32 v18, {L_ST}, v18
    """)


def stat_final(a, P):
    for c in range(3):
        for su, sq, _ in P:
            a(f"v_cndmask_b32 v{sq}, v{sq}, v{sq + 1 + c}, {sp(T0 + 2 * c)}")
    steps = ["v_mul_f32 v{su}, 0x3acccccd, v{su}|v_mul_f32 v{sq}, 0x3acccccd, v{sq}",
             "v_fma_f32 v{sq}, -v{su}, v{su}, v{sq}", "v_max_f32 v{sq}, 0, v{sq}", "v_cvt_pk_bf16_f32 v{su}, v{su}, v{sq}",
             "v_and_b32 v{sq}, 0xffff0000, v{su}|v_lshlrev_b32 v{su}, 16, v{su}", "v_add_f32 v{sq}, 0x3727c5ac, v{sq}",
             "v_cvt_pk_bf16_f32 v{sq}, v{sq}, v{sq}", "v_lshlrev_b32 v{sq}, 16, v{sq}", "v_sqrt_f32 v{sq}, v{sq}",
             "v_cvt_pk_bf16_f32 v{sq}, v{sq}, v{sq}", "v_lshlrev_b32 v{sq}, 16, v{sq}", "v_rcp_f32 v{su1}, v{sq}"]
    for stp in steps:
        for su, sq, _ in P:
            for t in stp.split("|"):
                a(t.format(su=su, sq=sq, su1=su + 1))
    a(f"s_mov_b64 exec, {sp(T0 + 12)}")
    for su, sq, off in P:
        a(f"ds_write_b64 v18, v[{su}:{su + 1}] offset:{off}")
    a("s_mov_b64 exec, -1")


def stat_prepass(a):
    a(f"""
    s_cmp_ge_u32 s{S_WAVE}, 5
    s_cbranch_scc1 L_sp_done
    s_mul_i32 s{T0}, s{S_WAVE}, 20480
    """)
    for j in range(4):
        a(f"v_add_u32 v{ACC + 8 + j}, s{T0}, v{XA + j}")
    NF = 7

    def rd(q):
        a(f"ds_read_b128 {vq(FR + 4 * (q % NF))}, v{ACC + 8 + q % 4} offset:{(q >> 2) * 256}")

    for q in range(NF - 1):
        rd(q)
    for q in range(20):
        if q + NF - 1 < 20:
            rd(q + NF - 1)
        a(f"s_waitcnt lgkmcnt({min(NF - 1, 19 - q)})")
        f = vq(FR + 4 * (q % NF))
        a(f"v_mfma_f32_16x16x32_bf16 {vq(ACC)}, {f}, {f}, {vq(ACC) if q else 0}")
        a(f"v_mfma_f32_16x16x32_bf16 {vq(ACC + 4)}, {vq(ONES)}, {f}, {vq(ACC + 4) if q else 0}")
    a(f"""
    v_and_b32 v16, 15, v1
    v_lshrrev_b32 v17, 4, v1
    """)
    stat_masks(a)
    a(f"s_lshl_b32 s{T0 + 14}, s{S_WAVE}, 7")
    a(f"v_add_u32 v18, s{T0 + 14}, v18")
    stat_final(a, [(ACC + 4, ACC, 0)])
    a.label("L_sp_done")


def gemm(a, role, L1, dma=False):
    mts, ops, acc = role_ops(role, L1)
    B = ROLES[role]["b"]
    seq = [(q, mt) for q in range(20) for mt in mts]
    NFR = 7 if L1 else 8
    AHEAD = NFR - 1
    WAH = int(os.environ.get('WAH', '8'))
    WB0 = [int(v) for v in os.environ.get("WB0", "2,5").split(",") if v]
    WB1 = [int(v) for v in os.environ.get('WB1', '2,5,8,11').split(',') if v]
    landed = [0]
    steps = list(DMA_STEPS)
    S = Sched(a)
    S.vm = [] if L1 else [i for i in range(0 if dma else 1, XPRE, 2)]

    def issue(i):
        q, mt = seq[i]
        f = FR + 4 * (i % NFR)
        if L1:
            if mt == 4:
                S.push(f"v_add_u32 v{XT}, 81920, v{XA + q % 4}")
                S.push(f"ds_read_b128 {vq(f)}, v{XT} offset:{(q >> 2) * 256}", "lds", i)
            else:
                S.push(f"ds_read_b128 {vq(f)}, v{XA + q % 4} offset:{mt * 20480 + (q >> 2) * 256}", "lds", i)
        else:
            while q >= landed[0]:
                n, sl = steps.pop(0)

                def bar(n=n):
                    assert not dma or n - 1 in S.vm or n <= XPRE
                    k = [x[0] for x in DMA_STEPS].index(n)
                    if os.environ.get("GST"):
                        a(f"{CLK} s[{64 + 6 * k}:{65 + 6 * k}]")
                    if any(r < n for r in S.vm):
                        a(f"s_waitcnt vmcnt({len([r for r in S.vm if r >= n])})")
                        S.vm[:] = [r for r in S.vm if r >= n]
                    if os.environ.get("GST"):
                        a(f"{CLK} s[{66 + 6 * k}:{67 + 6 * k}]")
                    a("s_barrier")
                    if os.environ.get("GST"):
                        a(f"{CLK} s[{68 + 6 * k}:{69 + 6 * k}]")
                S.push(bar)
                landed[0] = sl
            b, o = (XA, q * 5120) if q < 12 else (XA + 1, (q - 12) * 5120)
            S.push(f"ds_read_b64_tr_b16 v[{f}:{f + 1}], v{b} offset:{o + 32 * mt}", "lds", i)
            S.push(f"ds_read_b64_tr_b16 v[{f + 2}:{f + 3}], v{b} offset:{o + 32 * mt + 2560}", "lds", i)

    def wload(q):
        for b in B:
            S.push(f"global_load_dwordx4 {vq(WREG + 80 * b + 4 * q)}, v{WA + q % 4}, {sp(T0 + 6 + 2 * b)} sc1", "vm", q)
            if q % 4 == 3 and q < 19:
                S.push(lambda b=b: add64(a, T0 + 6 + 2 * b, T0 + 6 + 2 * b, 4096))

    if L1:
        for q in range(WAH):
            wload(q)
            if q in WB0:
                S.push("s_barrier")
        S.flush()
        stamp(a, 4)
    for i in range(AHEAD):
        issue(i)
    S.flush()
    rounds = XPRE
    for i, (q, mt) in enumerate(seq):
        if i + AHEAD < len(seq):
            issue(i + AHEAD)
        if L1 and mt == mts[0] and q in WB1:
            S.push("s_barrier")
        if L1 and mt == mts[0] and q + WAH < 20:
            wload(q + WAH)
        if L1 and role in "CE" and q == 20 - WAH and mt == mts[0]:
            for ln in f"""s_mul_i32 s{T0}, s{S_HG}, {30 * 128}
            s_add_u32 s{T0}, s{T0}, {FLAGS + ST_WO * FSTAGE}
            v_lshl_add_u32 v{WA}, v1, 7, s{T0}
            s_lshr_b32 s{T0}, s{S_SLOT}, 1
            s_lshl_b32 s{T0}, s{T0}, 9
            s_add_u32 s{T0}, s{T0}, {FLAGS + ST_PX * FSTAGE}
            s_lshl_b32 s{T0 + 1}, s{S_ODD}, 7
            v_and_b32 v{WA + 1}, s{T0 + 1}, v{WA}
            s_xor_b32 s{T0 + 1}, s{S_ODD}, 1
            s_lshl_b32 s{T0 + 1}, s{T0 + 1}, 8
            s_add_u32 s{T0}, s{T0}, s{T0 + 1}
            v_add_u32 v{WA + 1}, s{T0}, v{WA + 1}
            v_cmp_gt_u32 vcc, 20, v1
            s_nop 1
            v_cndmask_b32 v{WA}, v{WA + 1}, v{WA}, vcc""".split("\n"):
                S.push(ln)
            S.push(lambda: poll_issue(a, [WA], WA + 2), "vm", "flag")
        if dma and mt in mts[1:1 + XRATE] and rounds < 25:
            S.push(lambda r=rounds: x2_round(a, r, r - 1 if r > XPRE else XPRE - 2 + XPRE % 2), "vm", rounds)
            rounds += 1
        w = f"lgkmcnt({S.need('lds', i)})"
        if L1 and mt == mts[0]:
            w = f"vmcnt({S.need('vm', q)}) " + w
        a(f"s_waitcnt {w}")
        f = vq(FR + 4 * (i % NFR))
        n = len(ops[mt])
        for k, op in enumerate(ops[mt]):
            c = vq(acc[(mt, op)])
            A = vq(WREG + 80 * op[1] + 4 * q) if op[0] == "w" else f if op[0] == "S" else vq(ONES)
            S.mfma(f"v_mfma_f32_16x16x32_bf16 {c}, {A}, {f}, {c if q else 0}", per=-(-len(S.q) // (n - k)) if len(S.q) <= 2 * (n - k) else 2)
    S.flush()
    if os.environ.get("GST") and not L1:
        a(f"{CLK} s[94:95]")
        a("s_waitcnt lgkmcnt(0)")
        a("s_branch L_fin")
    if L1 and role in "CE":
        L = uid("px")
        poll(a, [WA], WA + 2, issued=True)
        a(f"""
        s_sub_u32 s{T0}, s{S_WAVE}, 4
        s_cmp_le_u32 s{T0}, s{S_ODD}
        s_cbranch_scc0 {L}
        s_cmp_eq_u32 s{S_ODD}, 0
        s_cselect_b32 s{T0}, 2, s{T0}
        s_lshr_b32 s{T0 + 4}, s{S_SLOT}, 1
        s_mul_i32 s{T0 + 4}, s{T0 + 4}, 3
        s_add_u32 s{T0 + 4}, s{T0 + 4}, s{T0}
        s_mul_i32 s{T0 + 4}, s{T0 + 4}, 3072
        s_add_u32 s{T0 + 4}, s{T0 + 4}, {PX}
        v_lshl_add_u32 v{WA}, v1, 4, s{T0 + 4}
        s_mul_i32 s{T0}, s{T0}, {UB}
        s_add_u32 m0, s{T0}, {R_T + 6 * UB}
        v_mov_b32 v{WA + 1}, 0
        global_load_lds_dwordx4 v{WA}, {sp(P_WS)} sc1
        global_load_lds_dwordx4 v{WA}, {sp(P_WS)} offset:1024 sc1
        global_load_lds_dwordx4 v{WA}, {sp(P_WS)} offset:2048 sc1
        ds_write_addtid_b32 v{WA + 1} offset:3072
        """)
        a.label(L)
    for i in range(3):
        if L1:
            a(f"ds_read_b64_tr_b16 v[{RES + 2 * i}:{RES + 2 * i + 1}], v{RSA + i}")
        else:
            a(f"ds_read_b64 v[{RES + 2 * i}:{RES + 2 * i + 1}], v{RSA + i}")
    a(f"""
    v_and_b32 v16, 15, v1
    v_lshrrev_b32 v17, 4, v1
    """)
    st = () if L1 else ROLES[role]["st"]
    if st:
        stat_masks(a)
        stat_final(a, [(acc[(mt, ("U", 0))], acc[(mt, ("S", 0))], 128 * mt) for mt in st])
    a(f"""
    s_lshl_b32 s{T0}, s{S_WAVE}, 7
    s_add_u32 s{T0}, s{T0}, {L_CS}
    v_lshl_add_u32 v19, v17, 4, s{T0}
    """)
    if L1:
        a("s_mov_b64 exec, 0x10001")
        a("s_mov_b32 exec_hi, 0x10001")
        for b in ROLES[role]["b"]:
            a(f"ds_write_b128 v19, {vq(acc[(0, ('w', b))])} offset:{64 * b}")
        a("s_mov_b64 exec, -1")
    eo = role in "ABC"
    a(f"""
    s_lshl_b32 s{T0}, s{S_WAVE}, 6
    s_cmp_eq_u32 s{S_WAVE}, 2
    s_cselect_b32 s{T0}, 192, s{T0}
    s_cmp_eq_u32 s{S_WAVE}, 3
    s_cselect_b32 s{T0}, 128, s{T0}
    s_add_u32 s{T0}, s{T0}, {R_X}
    v_mul_u32_u24 v20, {QS}, v16
    {"v_lshl_add_u32 v20, v17, 4, v20" if eo else "v_and_b32 v21, 1, v17"}
    {"" if eo else "v_lshl_add_u32 v20, v21, 4, v20"}
    {"" if eo else "v_lshrrev_b32 v21, 1, v17"}
    {"" if eo else "v_lshl_add_u32 v20, v21, 3, v20"}
    v_add_u32 v20, s{T0}, v20
    v_lshlrev_b32 v18, 3, v16
    v_add_u32 v18, {L_ST}, v18
    s_waitcnt lgkmcnt(0)
    s_barrier
    """)
    stamp_l(a, 6, 14)
    emts = [mt for mt in mts if any(op[0] == "w" and not (mt == 0 and op[1] in ROLES[role]["q"]) for op in ops[mt])]
    MS, CSR = 24, 36
    for mt in emts:
        a(f"ds_read_b64 v[{MS + 2 * mt}:{MS + 2 * mt + 1}], v18 offset:{128 * mt}")
    for b in ROLES[role]["b"]:
        a(f"ds_read_b128 {vq(CSR + 4 * b)}, v19 offset:{64 * b}")
    a("s_waitcnt lgkmcnt(0)")
    tl = [(mt, b) for mt in emts for b in ROLES[role]["b"] if not (mt == 0 and b in ROLES[role]["q"])]
    for mt, b in tl:
        c = acc[(mt, ("w", b))]
        for r in range(4):
            a(f"v_fma_f32 v{c + r}, -v{MS + 2 * mt}, v{CSR + 4 * b + r}, v{c + r}")
    for mt, b in tl:
        c = acc[(mt, ("w", b))]
        for r in range(4):
            a(f"v_mul_f32 v{c + r}, v{c + r}, v{MS + 2 * mt + 1}")
    if eo:
        for mt in emts:
            e, o = acc[(mt, ("w", 0))], acc[(mt, ("w", 1))]
            for r in range(4):
                a(f"v_cvt_pk_bf16_f32 v{e + r}, v{e + r}, v{o + r}")
            a(f"ds_write_b128 v20, {vq(e)} offset:{16 * mt * QS}")
    else:
        for mt, b in tl:
            c = acc[(mt, ("w", b))]
            a(f"v_permlane32_swap_b32 v{c}, v{c + 2}")
            a(f"v_permlane32_swap_b32 v{c + 1}, v{c + 3}")
        for mt, b in tl:
            c = acc[(mt, ("w", b))]
            a(f"v_cvt_pk_bf16_f32 v{c}, v{c}, v{c + 2}")
            a(f"v_cvt_pk_bf16_f32 v{c + 1}, v{c + 1}, v{c + 3}")
            a(f"ds_write_b64 v20, v[{c}:{c + 1}] offset:{16 * mt * QS + 32 * b}")


def gemm_all(a, L1):
    tag = "g1" if L1 else "g2"
    if not L1:
        a(f"""
        s_cmp_lt_u32 s{S_WAVE}, 4
        s_cbranch_scc1 L_{tag}_np
        s_setprio 1
        """)
        a.label(f"L_{tag}_np")
    a(f"""
    s_cmp_eq_u32 s{S_WAVE}, 0
    s_cbranch_scc1 L_{tag}A
    s_cmp_eq_u32 s{S_WAVE}, 1
    s_cbranch_scc1 L_{tag}B
    s_cmp_eq_u32 s{S_WAVE}, 3
    s_cbranch_scc1 L_{tag}D
    s_cmp_eq_u32 s{S_WAVE}, 7
    s_cbranch_scc1 L_{tag}E
    """)
    if not L1:
        a(f"""
        s_cmp_eq_u32 s{S_WAVE}, 2
        s_cbranch_scc1 L_{tag}c
        """)
    for role in "CABDE" if L1 else "CcABDE":
        if role != "C":
            a.label(f"L_{tag}{role}")
        gemm(a, role.upper(), L1, dma=not L1 and role in "CE")
        a("s_branch L_a1_post")


def attention(a):
    Q, K, S, O, P = 16, 26, 56, 68, 88
    a(f"""
    v_bfe_u32 v2, v1, 2, 1
    v_lshrrev_b32 v3, 5, v1
    v_bfe_u32 v4, v1, 2, 2
    v_and_b32 v5, 3, v1
    s_and_b32 s{T0 + 1}, s{S_WAVE}, 1
    s_lshl_b32 s{T0 + 1}, s{T0 + 1}, 2
    v_bfe_u32 v6, v1, 3, 2
    v_add_u32 v6, s{T0 + 1}, v6
    v_lshl_add_u32 v7, v6, 2, v5
    v_lshl_add_u32 v7, v7, 1, v2
    s_lshr_b32 s{T0}, s{S_WAVE}, 1
    s_mul_i32 s{T0}, s{T0}, 80
    s_add_u32 s{T0}, s{T0}, {R_X}
    v_mul_u32_u24 v94, 40, v3
    v_add_u32 v94, s{T0}, v94
    v_mul_u32_u24 v8, {QS}, v7
    v_add_u32 v8, v94, v8
    v_bfe_u32 v9, v1, 4, 1
    v_lshl_add_u32 v9, v9, 1, s{T0 + 1}
    v_bfe_u32 v2, v1, 1, 1
    v_add_u32 v9, v9, v2
    v_lshl_add_u32 v9, v9, 2, v4
    v_and_b32 v2, 1, v1
    v_lshl_add_u32 v9, v9, 1, v2
    v_mul_u32_u24 v9, {QS}, v9
    v_add_u32 v9, v94, v9
    v_mul_u32_u24 v2, 40, v3
    v_lshl_add_u32 v9, v3, 3, v9
    v_sub_u32 v94, v9, v2
    """)
    for j in range(5):
        a(f"ds_read_b64 v[{Q + 2 * j}:{Q + 2 * j + 1}], v8 offset:{16 * QS + 8 * j}")
    for d in (1, 0):
        for j in range(5):
            a(f"ds_read_b64 v[{K + 10 * d + 2 * j}:{K + 10 * d + 2 * j + 1}], v8 offset:{(16 - 8 * d) * QS + 160 + 8 * j}")
    a("s_waitcnt lgkmcnt(10)")
    for j in range(5):
        a(f"ds_read_b64 v[{K + 20 + 2 * j}:{K + 20 + 2 * j + 1}], v8 offset:{160 + 8 * j}")
    a(f"""
    s_mul_i32 s{T0}, s{S_HG}, 10
    s_lshr_b32 s{T0 + 1}, s{S_WAVE}, 1
    s_mul_i32 s{T0 + 1}, s{T0 + 1}, 5
    s_add_u32 s{T0}, s{T0}, s{T0 + 1}
    s_lshl_b32 s{T0}, s{T0}, 8
    s_mul_i32 s{T0 + 1}, s{S_RB}, {4 * 20480}
    s_add_u32 s{T0}, s{T0}, s{T0 + 1}
    s_add_u32 s{T0}, s{T0}, s{S_BOFF}
    s_add_u32 s{T0}, s{T0}, {OB}
    v_mul_u32_u24 v4, 768, v3
    v_lshrrev_b32 v2, 4, v7
    v_mul_u32_u24 v2, 20480, v2
    v_and_b32 v3, 15, v7
    v_lshl_add_u32 v2, v3, 4, v2
    v_add_u32 v2, v2, v4
    v_add_u32 v2, s{T0}, v2
    v_cmp_le_u32 {sp(T0 + 2)}, 1, v5
    v_cmp_le_u32 {sp(T0 + 4)}, 2, v5
    v_cmp_le_u32 {sp(T0 + 6)}, 3, v5
    v_mov_b32 v3, 0xffff
    v_cndmask_b32 v4, 0, v3, {sp(T0 + 4)}
    v_cndmask_b32 v3, v3, -1, {sp(T0 + 2)}
    v_cndmask_b32 v4, v4, -1, {sp(T0 + 6)}
    s_waitcnt lgkmcnt(5)
    """)
    for j in range(5):
        for d in (1, 0):
            c = vq(S + 4 * d)
            a(f"v_mfma_f32_4x4x4_16b_bf16 {c}, v[{K + 10 * d + 2 * j}:{K + 10 * d + 2 * j + 1}], v[{Q + 2 * j}:{Q + 2 * j + 1}], {c if j else 0}")
    a("s_waitcnt lgkmcnt(0)")
    for j in range(5):
        c = vq(S + 8)
        a(f"v_mfma_f32_4x4x4_16b_bf16 {c}, v[{K + 20 + 2 * j}:{K + 20 + 2 * j + 1}], v[{Q + 2 * j}:{Q + 2 * j + 1}], {c if j else 0}")
    for d in range(3):
        for j in range(5):
            a(f"ds_read_b64_tr_b16 v[{K + 10 * d + 2 * j}:{K + 10 * d + 2 * j + 1}], v{9 if j < 4 else 94} offset:{(16 - 8 * d) * QS + 320 + 8 * j}")
    a(f"""
    s_cmp_lg_u32 s{S_RB}, 0
    s_cbranch_scc1 L_at_nomask
    v_mov_b32 v{P}, 0xce6e6b28
    v_cmp_eq_u32 vcc, 0, v6
    v_cmp_ge_u32 {sp(T0 + 8)}, 1, v6
    """)
    for r in range(4):
        a(f"v_cndmask_b32 v{S + 4 + r}, v{S + 4 + r}, v{P}, vcc")
    for r in range(1, 4):
        a(f"v_cndmask_b32 v{S + 8 + r}, v{S + 8 + r}, v{P}, {sp(T0 + 8)}")
    a.label("L_at_nomask")
    for r in range(1, 4):
        a(f"v_cndmask_b32 v{S + r}, v{S + 8 + r}, v{S + r}, {sp(T0 + 2 * r)}")

    def round8():
        for w in range(4):
            a(f"v_cvt_pk_bf16_f32 v{P + w}, v{S + 2 * w}, v{S + 2 * w + 1}")
        for w in range(4):
            a(f"v_lshlrev_b32 v{S + 2 * w}, 16, v{P + w}")
            a(f"v_and_b32 v{S + 2 * w + 1}, 0xffff0000, v{P + w}")

    round8()
    a(f"s_mov_b32 s{T0 + 8}, {SCALE}")
    a(f"s_mov_b32 s{T0 + 9}, {SCALE}")
    for w in range(4):
        a(f"v_pk_mul_f32 v[{S + 2 * w}:{S + 2 * w + 1}], v[{S + 2 * w}:{S + 2 * w + 1}], {sp(T0 + 8)}")
    round8()
    a(f"""
    v_max3_f32 v{P}, v{S}, v{S + 1}, v{S + 2}
    v_max3_f32 v{P + 1}, v{S + 3}, v{S + 4}, v{S + 5}
    v_max3_f32 v{P}, v{P}, v{S + 6}, v{S + 7}
    v_max_f32 v{P}, v{P}, v{P + 1}
    s_mov_b32 s{T0 + 8}, {LOG2E}
    s_mov_b32 s{T0 + 9}, {LOG2E}
    v_mov_b32 v{P + 1}, v{P}
    """)
    for w in range(4):
        a(f"v_pk_add_f32 v[{S + 2 * w}:{S + 2 * w + 1}], v[{S + 2 * w}:{S + 2 * w + 1}], v[{P}:{P + 1}] neg_lo:[0,1] neg_hi:[0,1]")
    for w in range(4):
        a(f"v_pk_mul_f32 v[{S + 2 * w}:{S + 2 * w + 1}], v[{S + 2 * w}:{S + 2 * w + 1}], {sp(T0 + 8)}")
    for w in range(8):
        a(f"v_exp_f32 v{S + w}, v{S + w}")
    a(f"""
    v_add_f32 v{P}, v{S}, v{S + 1}
    v_add_f32 v{P + 1}, v{S + 2}, v{S + 3}
    v_add_f32 v{P + 2}, v{S + 4}, v{S + 5}
    v_add_f32 v{P + 3}, v{S + 6}, v{S + 7}
    v_add_f32 v{P}, v{P}, v{P + 1}
    v_add_f32 v{P + 2}, v{P + 2}, v{P + 3}
    v_add_f32 v{P}, v{P}, v{P + 2}
    v_rcp_f32 v{P}, v{P}
    """)
    for w in range(8):
        a(f"v_mul_f32 v{S + w}, v{S + w}, v{P}")
    a(f"""
    v_cvt_pk_bf16_f32 v{P + 4}, v{S}, v{S + 1}
    v_cvt_pk_bf16_f32 v{P + 5}, v{S + 2}, v{S + 3}
    v_cvt_pk_bf16_f32 v{P + 2}, v{S + 4}, v{S + 5}
    v_cvt_pk_bf16_f32 v{P + 3}, v{S + 6}, v{S + 7}
    v_and_b32 v{P}, v3, v{P + 4}
    v_and_b32 v{P + 1}, v4, v{P + 5}
    v_xor_b32 v{P + 4}, v{P}, v{P + 4}
    v_xor_b32 v{P + 5}, v{P + 1}, v{P + 5}
    s_waitcnt lgkmcnt(0)
    """)
    for d in (1, 0, 2):
        for j in range(5):
            c = vq(O + 4 * j)
            a(f"v_mfma_f32_4x4x4_16b_bf16 {c}, v[{K + 10 * d + 2 * j}:{K + 10 * d + 2 * j + 1}], v[{P + 2 * d}:{P + 2 * d + 1}], {0 if d == 1 else c}")
    for i in range(10):
        a(f"v_cvt_pk_bf16_f32 v{Q + i}, v{O + 2 * i}, v{O + 2 * i + 1}")
    a(f"""
    global_store_dwordx4 v2, {vq(Q)}, {sp(P_WS)} sc1
    global_store_dwordx4 v2, {vq(Q + 4)}, {sp(P_WS)} offset:256 sc1
    v_mov_b32 v{Q + 10}, v{Q + 8}
    v_mov_b32 v{Q + 11}, v{Q + 9}
    v_permlane32_swap_b32 v{Q + 8}, v{Q + 10}
    v_permlane32_swap_b32 v{Q + 9}, v{Q + 11}
    s_mov_b32 exec_hi, 0
    global_store_dwordx4 v2, {vq(Q + 8)}, {sp(P_WS)} offset:512 sc1
    s_mov_b64 exec, -1
    """)
```

```python
from mcommon import *
import g_a1, g_start
import model_conv as mc
import model_ssm as ms
import numpy as np

RES = g_a1.RES
UB = g_start.UB
SEC = dict(near=(0, 600), g9=(600, 104), g7=(704, 104), g5=(808, 136), g3=(944, 136))
NLIN = 1080
LINB = 2304
LIN = L_MAX + 64
assert LIN + 6 * LINB <= R_X and LIN % 16 == 0


LM = R_X + 3 * DATA_CH
LR = LM + 4096
SGS = 144
SG = R_X + 57344


def lin_sources():
    out = []
    near = lambda l: mc.bf16r(l) if 0 <= l <= 514 else 1024 if l in (547, 548) else -1
    g = {"g9": lambda m: 16 * m if 65 <= m <= 128 else -1, "g7": lambda m: 16 * m + 8 if 64 <= m <= 127 else -1,
         "g5": lambda m: 8 * m if 65 <= m <= 128 else -1, "g3": lambda m: 8 * m + 4 if 64 <= m <= 127 else -1}
    top = {"g9": 129, "g7": 128, "g5": 162, "g3": 161}
    for k, (b, n) in SEC.items():
        for x in range(n):
            out.append(near(576 - x) if k == "near" else g[k](top[k] - x))
    return out


def chunk_table():
    out = []

    def add(sec, x0, dst):
        x = SEC[sec][0] + x0
        out.append((2 * x if x % 2 == 0 else LINB + 2 * (x + 1), dst))

    for sg in range(8):
        for sl in range(73):
            add("near", 8 * (sl + 1) - sg, (sg * TS8 + T_NEAR + sl) * 16)
        for sl in range(11):
            add("g9", 8 * (sl + 1) - sg, (sg * TS8 + T_G9 + sl) * 16)
            add("g7", 8 * (sl + 1) - sg, (sg * TS8 + T_G7 + sl) * 16)
    for q in range(4):
        for sl in range(15):
            add("g5", 8 * (sl + 1) - 2 * q, T4_BASE + (q * TS4 + T_G5 + sl) * 16)
            add("g3", 8 * (sl + 1) - 2 * q, T4_BASE + (q * TS4 + T_G3 + sl) * 16)
    return out


def tables():
    t1 = [ms.part_offset(p) if p >= 0 else 3072 for p in lin_sources()]
    t1 += [3072] * (1088 - len(t1))
    t2 = chunk_table()
    t2 += [t2[-1]] * (1024 - len(t2))
    s = ".p2align 7\nL_tab1:\n"
    for i in range(0, len(t1), 16):
        s += ".short " + ", ".join(str(v) for v in t1[i:i + 16]) + "\n"
    s += "L_tab2:\n"
    for i in range(0, len(t2), 8):
        s += ".long " + ", ".join(str(a | (b << 16)) for a, b in t2[i:i + 8]) + "\n"
    return s + ".fill 32, 4, 0\n"


def wo_dma(a, q0, per, w0):
    a(f"""
    s_sub_u32 s{T0}, s{S_WAVE}, {w0}
    s_mul_i32 s{T0}, s{T0}, {per * 1024}
    s_add_u32 s{T0}, s{T0}, {q0 * 1024}
    s_mul_i32 s{T0 + 1}, s{S_HG}, 102400
    s_add_u32 s{T0 + 1}, s{T0 + 1}, s{T0}
    s_add_u32 s{T0 + 1}, s{T0 + 1}, {WOP}
    v_lshlrev_b32 v24, 4, v1
    """)
    add64(a, T0 + 2, P_WS, f"s{T0 + 1}")
    for i in range(per):
        if i % 4 == 0:
            a(f"s_add_u32 m0, s{T0}, {R_X + i * 1024}")
            if i:
                add64(a, T0 + 2, T0 + 2, 4096)
        a(f"global_load_lds_dwordx4 v24, {sp(T0 + 2)} offset:{1024 * (i % 4)} sc1")


def post_gemm(a):
    a.label("L_a1_post")
    a("s_setprio 0")
    a(f"""
    s_cmp_lt_u32 s{S_WAVE}, 4
    s_cbranch_scc1 L_pg_lo
    s_waitcnt lgkmcnt(0)
    s_barrier
    s_cmp_eq_u32 s{S_LAYER}, 0
    s_cbranch_scc1 L_pg_l0
    """)
    wo_dma(a, 40, 15, 4)
    a("s_branch L_pg_join")
    a.label("L_pg_l0")
    tap_table_loads(a)
    wo_dma(a, 40, 15, 4)
    a("s_waitcnt vmcnt(15)")
    tap_build(a)
    if EXP == "o":
        tap_expand4(a)
    a("s_branch L_pg_join")
    a.label("L_pg_lo")
    a(f"""
    s_waitcnt lgkmcnt(0)
    s_barrier
    """)
    stamp_l(a, 7, 14)
    g_a1.attention(a)
    stamp_l(a, 8, 14)
    a(f"""
    s_lshl_b32 s{T0}, s{S_LAYER}, 2
    s_add_u32 s{T0}, s{T0}, {L_CTR + 16}
    s_waitcnt vmcnt(0)
    """)
    lds_last(a, f"s{T0}", 4, 2, 4)
    a(f"""
    s_cbranch_scc0 L_pg_np
    s_lshl_b32 s{T0 + 1}, s{S_RB}, 3
    s_add_u32 s{T0 + 1}, s{T0 + 1}, s{S_HG}
    s_lshl_b32 s{T0 + 1}, s{T0 + 1}, 7
    s_add_u32 s{T0 + 1}, s{T0 + 1}, s{S_FOFF}
    s_add_u32 s{T0 + 1}, s{T0 + 1}, {FLAGS + ST_O0 * FSTAGE}
    """)
    publish(a, T0 + 1, 3, 4)
    a(f"""
    v_mov_b32 v3, 1
    s_mov_b64 exec, 1
    ds_add_u32 v2, v3
    s_mov_b64 exec, -1
    """)
    a.label("L_pg_np")
    stamp_l(a, 9, 14)
    lds_spin(a, f"s{T0}", 5, 2, 3)
    wo_dma(a, 0, 10, 0)
    a(f"""
    s_cmp_eq_u32 s{S_WAVE}, 0
    s_cbranch_scc0 L_pg_join
    s_lshl_b32 s{T0}, s{S_RB}, 10
    s_add_u32 s{T0}, s{T0}, s{S_FOFF}
    s_add_u32 s{T0}, s{T0}, {FLAGS + ST_O0 * FSTAGE}
    v_and_b32 v2, 7, v1
    v_lshl_add_u32 v2, v2, 7, s{T0}
    """)
    poll(a, [2], 4)
    a.label("L_pg_join")


def treduce(a, V, even, lo2, tmp):
    K, S = tmp, tmp + 4
    for p in range(2):
        for c in range(2):
            a(f"v_cndmask_b32 v{K + 2 * p + c}, v{V[2 * p + 1][c]}, v{V[2 * p][c]}, {sp(even)}")
            a(f"v_cndmask_b32 v{S + 2 * p + c}, v{V[2 * p][c]}, v{V[2 * p + 1][c]}, {sp(even)}")
    for i in range(4):
        a(f"v_add_f32_dpp v{K + i}, v{S + i}, v{K + i} quad_perm:[1,0,3,2] row_mask:0xf bank_mask:0xf")
    for c in range(2):
        a(f"v_cndmask_b32 v{S + c}, v{K + c}, v{K + 2 + c}, {sp(lo2)}")
        a(f"v_cndmask_b32 v{K + c}, v{K + 2 + c}, v{K + c}, {sp(lo2)}")
    for c in range(2):
        a(f"v_add_f32_dpp v{K + c}, v{S + c}, v{K + c} quad_perm:[2,3,0,1] row_mask:0xf bank_mask:0xf")
    for sh in (4, 8):
        for c in range(2):
            a(f"v_add_f32_dpp v{K + c}, v{K + c}, v{K + c} row_ror:{sh} row_mask:0xf bank_mask:0xf")


def a2(a):
    OF, AC, RG, NRG = 16, 56, 76, 5
    if EXP == "a":
        a(f"""
        s_cmp_eq_u32 s{S_LAYER}, 0
        s_cbranch_scc0 L_u_nt
        """)
        tap_chunk_loads(a)
        a.label("L_u_nt")
    a(f"""
    v_and_b32 v6, 15, v1
    v_lshrrev_b32 v7, 4, v1
    s_and_b32 s{T0}, s{S_WAVE}, 3
    s_lshr_b32 s{T0 + 1}, s{S_WAVE}, 2
    s_lshl_b32 s{T0 + 2}, s{S_RB}, 2
    s_add_u32 s{T0 + 2}, s{T0 + 2}, s{T0}
    s_mul_i32 s{T0 + 2}, s{T0 + 2}, 20480
    s_mul_i32 s{T0 + 3}, s{T0 + 1}, 10240
    s_add_u32 s{T0 + 2}, s{T0 + 2}, s{T0 + 3}
    s_add_u32 s{T0 + 2}, s{T0 + 2}, s{S_BOFF}
    s_add_u32 s{T0 + 2}, s{T0 + 2}, {OB}
    v_lshl_add_u32 v2, v1, 4, s{T0 + 2}
    v_add_u32 v3, 4096, v2
    v_add_u32 v4, 8192, v2
    s_mul_i32 s{T0 + 3}, s{T0 + 1}, 51200
    s_add_u32 s{T0 + 3}, s{T0 + 3}, {R_X}
    v_lshrrev_b32 v5, 2, v1
    v_mul_u32_u24 v5, 160, v5
    v_and_b32 v8, 3, v1
    v_lshl_add_u32 v5, v8, 3, v5
    v_add_u32 v5, s{T0 + 3}, v5
    s_waitcnt vmcnt(0) lgkmcnt(0)
    s_barrier
    """)
    stamp_l(a, 10, 14)
    for s in range(10):
        a(f"global_load_dwordx4 {vq(OF + 4 * s)}, v{2 + s // 4}, {sp(P_WS)} offset:{1024 * (s % 4)} sc1")
    if EXP == "a":
        a(f"""
        s_cmp_eq_u32 s{S_LAYER}, 0
        s_cbranch_scc0 L_u_nb
        """)
        tap_expand(a)
        a.label("L_u_nb")
    seq = [(s, nt) for s in range(10) for nt in range(5)]
    pool = [RG + 4 * i for i in range(NRG)]
    slot = {}
    issued = [0]
    S = Sched(a)

    def issue():
        i = issued[0]
        s, nt = seq[i]
        f = slot[i] = pool.pop(0)
        S.push(f"ds_read_b64_tr_b16 v[{f}:{f + 1}], v5 offset:{s * 5120 + 32 * nt}", "lds", i)
        S.push(f"ds_read_b64_tr_b16 v[{f + 2}:{f + 3}], v5 offset:{s * 5120 + 32 * nt + 2560}", "lds", i)
        issued[0] += 1

    while pool:
        issue()
    S.flush()
    a(f"""
    s_mul_i32 s{T0 + 2}, s{T0}, 5120
    s_add_u32 s{T0 + 2}, s{T0 + 2}, {R_X}
    v_lshl_add_u32 v2, v1, 4, s{T0 + 2}
    s_mul_i32 s{T0 + 2}, s{T0 + 1}, {48 * SGS}
    s_lshl_b32 s{T0 + 3}, s{T0}, 5
    s_add_u32 s{T0 + 2}, s{T0 + 2}, s{T0 + 3}
    s_add_u32 s{T0 + 2}, s{T0 + 2}, {SG}
    v_mul_u32_u24 v3, {SGS}, v6
    v_lshl_add_u32 v3, v7, 3, v3
    v_add_u32 v3, s{T0 + 2}, v3
    s_mul_i32 s{T0 + 2}, s{S_LAYER}, {STATS_L}
    s_lshl_b32 s{T0 + 3}, s{S_RB}, 9
    s_add_u32 s{T0 + 2}, s{T0 + 2}, s{T0 + 3}
    s_lshl_b32 s{T0 + 3}, s{T0}, 7
    s_add_u32 s{T0 + 2}, s{T0 + 2}, s{T0 + 3}
    s_add_u32 s{T0 + 2}, s{T0 + 2}, {STATS}
    v_lshl_add_u32 v9, v7, 2, v8
    v_lshl_add_u32 v9, v9, 3, s{T0 + 2}
    v_and_b32 v8, 4, v1
    v_add_u32 v9, v9, v8
    v_cmp_eq_u32 {sp(T0 + 8)}, 0, v8
    v_and_b32 v8, 1, v1
    v_cmp_eq_u32 {sp(T0 + 4)}, 0, v8
    v_and_b32 v8, 2, v1
    v_cmp_eq_u32 {sp(T0 + 6)}, 0, v8
    """)
    covered = -1
    for i, (s, nt) in enumerate(seq):
        w = ""
        if i > covered:
            j = i + 1 if i + 1 < issued[0] - 2 else i
            w = f"lgkmcnt({S.need('lds', j)})"
            covered = j
        if nt == 0:
            w = f"vmcnt({9 - s}) " + w
        if w:
            a(f"s_waitcnt {w}")
        c = vq(AC + 4 * nt)
        a(f"v_mfma_f32_16x16x32_bf16 {c}, {vq(OF + 4 * s)}, {vq(slot[i])}, {c if s else 0}")
        pool.append(slot[i])
        if nt == 4:
            pool.append(OF + 4 * s)
        while pool and issued[0] < len(seq) and issued[0] - i <= 7:
            issue()
        S.flush(2 if len(S.q) <= 2 else 3)
    a("s_barrier")
    stamp_l(a, 11, 14)
    a(f"""
    s_cmp_ge_u32 s{S_WAVE}, 4
    s_cbranch_scc1 L_a2_k1
    """)
    for kh in range(2):
        if kh:
            a.label("L_a2_k1")
        keep = [0, 1, 2] if kh == 0 else [3, 4]
        send = [3, 4] if kh == 0 else [0, 1, 2]
        N = range(len(keep))
        for nt in send:
            a(f"ds_write_b128 v2, {vq(AC + 4 * nt)} offset:{1024 * nt}")
        a("s_waitcnt lgkmcnt(0)")
        a("s_barrier")
        PA, XF, XB, TM = 16, 28, 40, 46
        for i, nt in enumerate(keep):
            a(f"ds_read_b128 {vq(PA + 4 * i)}, v2 offset:{1024 * nt}")
        for i in N:
            a(f"""
            v_lshlrev_b32 v{XF + 4 * i}, 16, v{RES + 2 * i}
            v_and_b32 v{XF + 4 * i + 1}, 0xffff0000, v{RES + 2 * i}
            v_lshlrev_b32 v{XF + 4 * i + 2}, 16, v{RES + 2 * i + 1}
            v_and_b32 v{XF + 4 * i + 3}, 0xffff0000, v{RES + 2 * i + 1}
            """)
        a("s_waitcnt lgkmcnt(0)")

        def unpack(d, s):
            a(f"""
            v_lshlrev_b32 v{d}, 16, v{s}
            v_and_b32 v{d + 1}, 0xffff0000, v{s}
            v_lshlrev_b32 v{d + 2}, 16, v{s + 1}
            v_and_b32 v{d + 3}, 0xffff0000, v{s + 1}
            """)

        def pack(d, s):
            a(f"v_cvt_pk_bf16_f32 v{d}, v{s}, v{s + 1}")
            a(f"v_cvt_pk_bf16_f32 v{d + 1}, v{s + 2}, v{s + 3}")

        for i, nt in enumerate(keep):
            for r in range(4):
                a(f"v_add_f32 v{PA + 4 * i + r}, v{PA + 4 * i + r}, v{AC + 4 * nt + r}")
        for i in N:
            pack(XB + 2 * i, PA + 4 * i)
        for i in N:
            unpack(PA + 4 * i, XB + 2 * i)
        for i in N:
            for r in range(4):
                a(f"v_add_f32 v{XF + 4 * i + r}, v{XF + 4 * i + r}, v{PA + 4 * i + r}")
        for i in N:
            pack(XB + 2 * i, XF + 4 * i)
        for i in N:
            a(f"ds_write_b64 v3, v[{XB + 2 * i}:{XB + 2 * i + 1}] offset:{16 * SGS * i}")
        for i in N:
            unpack(XF + 4 * i, XB + 2 * i)
        SU, SQ = 56, 60
        for r in range(4):
            a(f"v_add_f32 v{SU + r}, v{XF + r}, v{XF + 4 + r}")
            a(f"v_mul_f32 v{SQ + r}, v{XF + r}, v{XF + r}")
        for r in range(4):
            a(f"v_fmac_f32 v{SQ + r}, v{XF + 4 + r}, v{XF + 4 + r}")
        if kh == 0:
            for r in range(4):
                a(f"v_add_f32 v{SU + r}, v{SU + r}, v{XF + 8 + r}")
                a(f"v_fmac_f32 v{SQ + r}, v{XF + 8 + r}, v{XF + 8 + r}")
        treduce(a, [(SU + r, SQ + r) for r in range(4)], T0 + 4, T0 + 6, 64)
        a(f"""
        v_cndmask_b32 v64, v65, v64, {sp(T0 + 8)}
        s_mov_b32 exec_lo, 0x00ff00ff
        s_mov_b32 exec_hi, 0x00ff00ff
        global_atomic_add_f32 v9, v64, {sp(P_WS)}
        s_mov_b64 exec, -1
        """)
        if kh == 0:
            a("s_branch L_a2_done")
    a.label("L_a2_done")
    a(f"""
    v_lshrrev_b32 v2, 3, v0
    v_and_b32 v3, 7, v0
    v_mul_u32_u24 v4, {SGS}, v2
    v_lshl_add_u32 v4, v3, 4, v4
    v_add_u32 v4, {SG}, v4
    s_mul_i32 s{T0 + 2}, s{S_HG}, {80 * 4096}
    s_lshl_b32 s{T0 + 3}, s{S_RB}, 7
    s_add_u32 s{T0 + 2}, s{T0 + 2}, s{T0 + 3}
    s_add_u32 s{T0 + 2}, s{T0 + 2}, s{S_BOFF}
    s_add_u32 s{T0 + 2}, s{T0 + 2}, {X1T}
    v_lshl_add_u32 v5, v2, 12, s{T0 + 2}
    v_lshl_add_u32 v5, v3, 4, v5
    v_add_u32 v8, {64 * 4096}, v5
    s_waitcnt lgkmcnt(0)
    s_barrier
    ds_read_b128 v[20:23], v4
    ds_read_b128 v[24:27], v4 offset:{64 * SGS}
    s_waitcnt lgkmcnt(1)
    global_store_dwordx4 v5, v[20:23], {sp(P_WS)} sc1
    s_cmp_ge_u32 s{S_WAVE}, 2
    s_cbranch_scc1 L_a2_st
    s_waitcnt lgkmcnt(0)
    global_store_dwordx4 v8, v[24:27], {sp(P_WS)} sc1
    """)
    a.label("L_a2_st")


def tap_table_loads(a):
    a(f"s_getpc_b64 {sp(T0 + 8)}")
    a.label("L_tbref")
    a(f"""
    s_add_u32 s{T0 + 8}, s{T0 + 8}, L_tab1-L_tbref
    s_addc_u32 s{T0 + 9}, s{T0 + 9}, 0
    v_and_b32 v70, 255, v0
    v_lshlrev_b32 v70, 1, v70
    v_and_b32 v72, 0x7e, v70
    """)
    for k in range(4):
        a(f"global_load_ushort v{76 + k}, v70, {sp(T0 + 8)} offset:{512 * k}")
    a(f"global_load_ushort v80, v72, {sp(T0 + 8)} offset:2048")
    if EXP == "o":
        a(f"v_lshlrev_b32 v71, 1, v70")
        a(f"v_add_u32 v71, 2176, v71")
        for k in range(4):
            a(f"global_load_dword v{81 + k}, v71, {sp(T0 + 8)} offset:{1024 * k}")


def bar4(a, n):
    a(f"""
    v_mov_b32 v74, {L_CTR + 32}
    v_mov_b32 v75, 1
    s_waitcnt lgkmcnt(0)
    s_mov_b64 exec, 1
    ds_add_u32 v74, v75
    s_mov_b64 exec, -1
    """)
    lds_spin(a, L_CTR + 32, 4 * n, 74, 75)


def tap_build(a):
    VA = 16
    bar4(a, 1)
    for k in range(5):
        for ch in range(3):
            for t in range(3):
                a(f"ds_read_b32 v{VA + 9 * k + 3 * ch + t}, v{76 + k} offset:{R_T + (3 * ch + t) * UB}")
        if k < 4:
            a(f"s_waitcnt lgkmcnt({6})")
    a(f"""
    v_add_u32 v70, {LIN}, v70
    v_add_u32 v72, {LIN + 2048}, v72
    v_mov_b32 v73, {L_MAX}
    s_waitcnt lgkmcnt(0)
    """)
    V = lambda k, ch: VA + 9 * k + 3 * ch
    for t in (1, 2):
        for k in range(5):
            for ch in range(3):
                a(f"v_add_f32 v{V(k, ch)}, v{V(k, ch)}, v{V(k, ch) + t}")
    MX = 62
    for ch in range(3):
        a(f"v_max3_f32 v{MX + ch}, abs(v{V(0, ch)}), abs(v{V(1, ch)}), abs(v{V(2, ch)})")
    for ch in range(3):
        a(f"v_max3_f32 v{MX + ch}, v{MX + ch}, abs(v{V(3, ch)}), abs(v{V(4, ch)})")
    for sh in (1, 2, 4, 8):
        for ch in range(3):
            a(f"v_max_f32_dpp v{MX + ch}, v{MX + ch}, v{MX + ch} row_ror:{sh} row_mask:0xf bank_mask:0xf")
    a("s_mov_b32 exec_lo, 0x00010001")
    a("s_mov_b32 exec_hi, 0x00010001")
    for ch in range(3):
        a(f"ds_max_f32 v73, v{MX + ch} offset:{4 * ch}")
    a("s_mov_b64 exec, -1")
    bar4(a, 2)
    a(f"""
    ds_read_b128 v[66:69], v73
    """)
    a("s_waitcnt lgkmcnt(0)")
    for ch in range(3):
        a(f"v_frexp_exp_i32_f32 v{66 + ch}, v{66 + ch}")
    for ch in range(3):
        a(f"v_sub_u32 v{MX + ch}, 14, v{66 + ch}")
        a(f"v_subrev_u32 v{66 + ch}, 22, v{66 + ch}")
    for ch in range(3):
        a(f"v_ldexp_f32 v{66 + ch}, 1.0, v{66 + ch}")
    for k in range(5):
        for ch in range(3):
            a(f"v_ldexp_f32 v{V(k, ch)}, v{V(k, ch)}, v{MX + ch}")
    for k in range(5):
        for ch in range(3):
            a(f"v_cvt_f16_f32 v{V(k, ch)}, v{V(k, ch)}")
    a(f"ds_write_b128 v73, v[66:69] offset:16")
    for k in range(5):
        for ch in range(3):
            ad, o = (70, 512 * k) if k < 4 else (72, 0)
            a(f"ds_write_b16 v{ad}, v{V(k, ch)} offset:{o + 2 * LINB * ch}")
            a(f"ds_write_b16 v{ad}, v{V(k, ch)} offset:{o + 2 * LINB * ch + LINB + 2}")
        if k in (1, 3):
            a("s_waitcnt lgkmcnt(2)")


EXP = os.environ.get("EXP", "o")


def tap_expand4(a):
    bar4(a, 3)
    for c in range(4):
        a(f"v_lshrrev_b32 v{85 + c}, 16, v{81 + c}")
        a(f"v_and_b32 v{81 + c}, 0xffff, v{81 + c}")
        a(f"v_add_u32 v{81 + c}, {LIN}, v{81 + c}")
    for ch in range(3):
        if ch:
            for c in range(4):
                a(f"v_add_u32 v{81 + c}, {2 * LINB}, v{81 + c}")
            a("s_waitcnt lgkmcnt(4)")
        for c in range(4):
            d = 16 + 16 * ch + 4 * c
            a(f"ds_read2_b32 v[{d}:{d + 1}], v{81 + c} offset0:0 offset1:1")
            a(f"ds_read2_b32 v[{d + 2}:{d + 3}], v{81 + c} offset0:2 offset1:3")
        if ch:
            a("s_waitcnt lgkmcnt(8)")
            for c in range(4):
                a(f"ds_write_b128 v{85 + c}, {vq(16 + 16 * (ch - 1) + 4 * c)} offset:{R_T + TAP_CH * (ch - 1)}")
    a("s_waitcnt lgkmcnt(0)")
    for c in range(4):
        a(f"ds_write_b128 v{85 + c}, {vq(48 + 4 * c)} offset:{R_T + TAP_CH * 2}")


def tap_chunk_loads(a):
    a(f"s_getpc_b64 {sp(T0 + 10)}")
    a.label("L_tbref2")
    a(f"""
    s_add_u32 s{T0 + 10}, s{T0 + 10}, L_tab2-L_tbref2
    s_addc_u32 s{T0 + 11}, s{T0 + 11}, 0
    v_lshlrev_b32 v80, 2, v0
    global_load_dword v81, v80, {sp(T0 + 10)}
    global_load_dword v82, v80, {sp(T0 + 10)} offset:2048
    """)


def tap_expand(a):
    for c in range(2):
        a(f"v_lshrrev_b32 v{85 + c}, 16, v{81 + c}")
        a(f"v_and_b32 v{81 + c}, 0xffff, v{81 + c}")
        a(f"v_add_u32 v{81 + c}, {LIN}, v{81 + c}")
    for ch in range(3):
        if ch:
            for c in range(2):
                a(f"v_add_u32 v{81 + c}, {2 * LINB}, v{81 + c}")
        for c in range(2):
            d = 56 + 8 * ch + 4 * c
            a(f"ds_read2_b32 v[{d}:{d + 1}], v{81 + c} offset0:0 offset1:1")
            a(f"ds_read2_b32 v[{d + 2}:{d + 3}], v{81 + c} offset0:2 offset1:3")
    for ch in range(3):
        a(f"s_waitcnt lgkmcnt({8 - 4 * ch})")
        for c in range(2):
            a(f"ds_write_b128 v{85 + c}, {vq(56 + 8 * ch + 4 * c)} offset:{R_T + TAP_CH * ch}")
    a("s_waitcnt lgkmcnt(0)")


PS = [int(v) for v in os.environ.get('PS', '12,6,4,4').split(',')]
PROGS = {1: [0, 1, 2, 3], 2: [4, 5], 3: [6, 7]}


def conv_prog(a, P):
    J = PROGS[P]
    AC, X1R, RG, NRG, EU = 16, 32, 40, 12, 88
    TN, T9, T4, DN, D5, D9 = 2, 3, 4, 5, 6, 7
    ops = []
    for kind, keys in (("near", range(18)), ("g5", (2, 3, 4)), ("g3", (2, 3, 4)), ("g9", (64, 80, 96, 112)), ("g7", (64, 80, 96, 112))):
        for ti in keys:
            for j in J:
                for k2, t2, di in conv_steps(j):
                    if k2 == kind and t2 == ti:
                        ops.append((j, kind, ti, di))
    frs, use = [], []
    last = None
    for j, kind, ti, di in ops:
        if last != (kind, ti):
            frs.append(("T", kind, ti))
            tix = len(frs) - 1
            last = (kind, ti)
        frs.append(("D", kind, di))
        use.append((tix, len(frs) - 1))
    lastuse = {}
    for m, (t, d) in enumerate(use):
        lastuse[t] = m
        lastuse[d] = m
    nread = lambda f: 2 if (f[0] == "D" and f[1] != "near") else 1

    S = Sched(a)

    def issue(i):
        w, kind, x = frs[i]
        r = RG + 4 * (i % NRG)
        if w == "T":
            if kind == "near":
                S.push(f"ds_read_b128 {vq(r)}, v{TN} offset:{16 * (68 - 4 * x)}", "lds", i)
            elif kind in ("g9", "g7"):
                S.push(f"ds_read_b128 {vq(r)}, v{T9} offset:{16 * ((T_G9 if kind == 'g9' else T_G7) + 14 - x // 8)}", "lds", i)
            else:
                S.push(f"ds_read_b128 {vq(r)}, v{T4} offset:{16 * ((T_G5 if kind == 'g5' else T_G3) + 16 - 4 * x)}", "lds", i)
        elif kind == "near":
            S.push(f"ds_read_b128 {vq(r)}, v{DN} offset:{64 * x + 448}", "lds", i)
        else:
            base, o, h = {"g5": (D5, D_U5 + 512 * x + 8, 64), "g3": (D5, D_U3 + 512 * x + 16, 64),
                          "g9": (D9, D_U9 + 1024 * x + 8, 128), "g7": (D9, D_U7 + 1024 * x + 24, 128)}[kind]
            S.push(f"ds_read_b64_tr_b16 v[{r}:{r + 1}], v{base} offset:{o}", "lds", i)
            S.push(f"ds_read_b64_tr_b16 v[{r + 2}:{r + 3}], v{base} offset:{o + h}", "lds", i)

    issued = 0

    def refill(m):
        nonlocal issued
        need = use[min(m, len(use) - 1)][1]
        while issued < len(frs) and issued < need + 1 + 9 and (issued < NRG or lastuse[issued - NRG] < m) \
                and sum(nread(f) for f in frs[need + 1:issued + 1]) <= 11:
            issue(issued)
            issued += 1

    refill(0)
    S.flush()
    first = set()
    covered = -1
    for m, (j, kind, ti, di) in enumerate(ops):
        need = use[m][1]
        assert issued > need
        if need > covered:
            tgt = use[m + 1][1] if m + 1 < len(ops) and use[m + 1][1] < issued - 3 else need
            a(f"s_waitcnt lgkmcnt({S.need('lds', tgt)})")
            covered = tgt
        T, D = vq(RG + 4 * (use[m][0] % NRG)), vq(RG + 4 * (need % NRG))
        c = vq(AC + 4 * J.index(j))
        A, B = (T, D) if kind == "near" else (D, T)
        a(f"v_mfma_f32_16x16x32_f16 {c}, {A}, {B}, {c if j in first else 0}")
        first.add(j)
        refill(m + 1)
        S.flush(2)
    for i, j in enumerate(J):
        a(f"ds_read_b64 v[{EU + 2 * i}:{EU + 2 * i + 1}], v8 offset:{512 * j}")
    N = range(len(J))
    Y, U = 40, 56
    for i in N:
        for r in range(4):
            a(f"v_mul_f32 v{Y + 4 * i + r}, v{AC + 4 * i + r}, v10")

    def pack(d, s):
        a(f"v_cvt_pk_bf16_f32 v{d}, v{s}, v{s + 1}")
        a(f"v_cvt_pk_bf16_f32 v{d + 1}, v{s + 2}, v{s + 3}")

    def unpack(d, s):
        a(f"""
        v_lshlrev_b32 v{d}, 16, v{s}
        v_and_b32 v{d + 1}, 0xffff0000, v{s}
        v_lshlrev_b32 v{d + 2}, 16, v{s + 1}
        v_and_b32 v{d + 3}, 0xffff0000, v{s + 1}
        """)

    PKD = 72
    for i in N:
        pack(PKD + 2 * i, Y + 4 * i)
    for i in N:
        unpack(Y + 4 * i, PKD + 2 * i)
    a("s_waitcnt vmcnt(0) lgkmcnt(0)")
    for i in N:
        for r in range(4):
            a(f"v_fma_mix_f32 v{U + 4 * i + r}, v{EU + 2 * i + r // 2}, v11, 0 op_sel:[{r % 2},0,0] op_sel_hi:[1,0,0]")
    for i in N:
        pack(PKD + 2 * i, U + 4 * i)
    for i in N:
        unpack(U + 4 * i, PKD + 2 * i)
    for i in N:
        for r in range(4):
            a(f"v_add_f32 v{Y + 4 * i + r}, v{Y + 4 * i + r}, v{U + 4 * i + r}")
    for i in N:
        pack(PKD + 2 * i, Y + 4 * i)
    for i in N:
        unpack(Y + 4 * i, PKD + 2 * i)
        unpack(U + 4 * i, X1R + 2 * i)
    for i in N:
        for r in range(4):
            a(f"v_add_f32 v{Y + 4 * i + r}, v{Y + 4 * i + r}, v{U + 4 * i + r}")
    for i in N:
        pack(PKD + 2 * i, Y + 4 * i)
    add64(a, T0 + 8, P_WS, X2T - X1T)
    for i, j in enumerate(J):
        a(f"global_store_dwordx2 v9, v[{PKD + 2 * i}:{PKD + 2 * i + 1}], {sp(T0 + 8)} offset:{512 * j} sc1")
    a("s_branch L_b_done")


def ln_chunk(a, X, U, MN, RS, TMP):
    F, PKD = TMP, TMP + 8

    def unpack(src):
        for e in range(4):
            a(f"v_lshlrev_b32 v{F + 2 * e}, 16, v{src + e}")
            a(f"v_and_b32 v{F + 2 * e + 1}, 0xffff0000, v{src + e}")

    def pack():
        for e in range(4):
            a(f"v_cvt_pk_bf16_f32 v{PKD + e}, v{F + 2 * e}, v{F + 2 * e + 1}")

    unpack(X)
    for e in range(8):
        a(f"v_sub_f32 v{F + e}, v{F + e}, v{MN + e}")
    pack()
    unpack(PKD)
    a("s_waitcnt lgkmcnt(0)")
    for e in range(8):
        a(f"v_mul_f32 v{F + e}, v{F + e}, v{RS + e}")
    pack()
    unpack(PKD)
    for e in range(4):
        a(f"v_cvt_pk_f16_f32 v{U + e}, v{F + 2 * e}, v{F + 2 * e + 1}")


def box_chunk(a, W, dst):
    O, U3, U5, U7, U9, P = 48, 56, 60, 64, 68, 72
    L = uid("bx")
    for j in range(7):
        a(f"v_alignbyte_b32 v{O + j}, v{W + j + 1}, v{W + j}, 2")
    for q in range(4):
        a(f"v_pk_add_f16 v{P + q}, v{O + 1 + q}, v{O + 2 + q}")
        a(f"v_pk_add_f16 v{U5 + q}, v{W + 1 + q}, v{W + 3 + q}")
    for q in range(4):
        a(f"v_pk_add_f16 v{U3 + q}, v{W + 2 + q}, v{P + q}")
    for q in range(4):
        a(f"v_pk_add_f16 v{U5 + q}, v{U5 + q}, v{U3 + q}")
    a(f"""
    ds_write_b128 v{dst}, {vq(U3)} offset:{D_U3 + 32}
    ds_write_b128 v{dst}, {vq(U5)} offset:{D_U5 + 32}
    s_cmp_ge_u32 s{T0 + 8}, 2
    s_cbranch_scc1 {L}
    """)
    for q in range(4):
        a(f"v_pk_add_f16 v{U7 + q}, v{O + q}, v{O + 3 + q}")
        a(f"v_pk_add_f16 v{U9 + q}, v{W + q}, v{W + 4 + q}")
    for q in range(4):
        a(f"v_pk_add_f16 v{U7 + q}, v{U7 + q}, v{U5 + q}")
    for q in range(4):
        a(f"v_pk_add_f16 v{U9 + q}, v{U9 + q}, v{U7 + q}")
    a(f"""
    ds_write_b128 v{dst}, {vq(U7)} offset:{D_U7 + 32}
    ds_write_b128 v{dst}, {vq(U9)} offset:{D_U9 + 32}
    """)
    a.label(L)


def conv_setup(a):
    a(f"""
    s_and_b32 s{T0 + 2}, s{S_WAVE}, 3
    s_lshr_b32 s{T0 + 3}, s{S_WAVE}, 2
    s_cmp_eq_u32 s{T0 + 2}, 3
    s_cselect_b32 s{T0}, s{T0 + 3}, s{T0 + 2}
    s_add_u32 s{T0 + 1}, s{T0 + 3}, 1
    s_cmp_eq_u32 s{T0 + 2}, 3
    s_cselect_b32 s{T0 + 1}, 3, s{T0 + 1}
    s_cmp_eq_u32 s{T0 + 2}, 2
    s_cbranch_scc0 L_b_role
    s_add_u32 s{T0 + 1}, s{T0 + 1}, s{S_ODD}
    s_cmp_eq_u32 s{T0 + 1}, 2
    s_cselect_b32 s{T0 + 4}, 1, 0
    s_andn2_b32 s{T0 + 4}, s{T0 + 4}, s{S_ODD}
    s_cmp_eq_u32 s{T0 + 4}, 1
    s_cselect_b32 s{T0 + 1}, 0, s{T0 + 1}
    """)
    a.label("L_b_role")
    a(f"""
    s_cmp_eq_u32 s{T0}, 1
    s_cselect_b32 s{T0 + 2}, s{S_CH + 1}, s{S_CH}
    s_cmp_eq_u32 s{T0}, 2
    s_cselect_b32 s{T0 + 2}, s{S_CH + 2}, s{T0 + 2}
    s_mul_i32 s{T0 + 3}, s{T0}, {TAP_CH}
    s_mul_i32 s{T0 + 4}, s{T0}, {DATA_CH}
    s_add_u32 s{T0 + 4}, s{T0 + 4}, {R_X}
    v_and_b32 v14, 15, v1
    v_lshrrev_b32 v15, 4, v1
    v_and_b32 v16, 7, v1
    v_mul_u32_u24 v16, {TS8}, v16
    v_bfe_u32 v17, v1, 3, 1
    v_sub_u32 v16, v16, v17
    v_add3_u32 v3, v16, v15, 1
    v_lshl_add_u32 v3, v3, 4, s{T0 + 3}
    v_and_b32 v17, 1, v15
    v_add3_u32 v16, v16, v17, 3
    v_and_b32 v18, 2, v15
    v_sub_u32 v16, v16, v18
    v_lshl_add_u32 v2, v16, 4, s{T0 + 3}
    v_and_b32 v16, 3, v1
    v_mul_u32_u24 v16, {TS4}, v16
    v_lshrrev_b32 v19, 2, v14
    v_sub_u32 v16, v16, v19
    v_add3_u32 v16, v16, v15, 3
    s_add_u32 s{T0 + 5}, s{T0 + 3}, {T4_BASE}
    v_lshl_add_u32 v4, v16, 4, s{T0 + 5}
    v_lshlrev_b32 v16, 5, v14
    v_lshl_add_u32 v5, v17, 4, v16
    v_lshlrev_b32 v18, 4, v18
    v_sub_u32 v5, v5, v18
    s_add_u32 s{T0 + 5}, s{T0 + 4}, {D_U + 64}
    v_add_u32 v5, s{T0 + 5}, v5
    v_and_b32 v17, 3, v1
    v_lshl_add_u32 v17, v17, 3, s{T0 + 4}
    v_lshl_add_u32 v6, v15, 7, v17
    v_lshl_add_u32 v6, v19, 4, v6
    v_lshl_add_u32 v7, v15, 8, v17
    v_lshl_add_u32 v7, v19, 5, v7
    v_lshl_add_u32 v16, v15, 3, v16
    s_add_u32 s{T0 + 5}, s{T0 + 4}, {D_U + 512}
    v_add_u32 v8, s{T0 + 5}, v16
    s_lshl_b32 s{T0 + 5}, s{T0 + 2}, 12
    s_add_u32 s{T0 + 5}, s{T0 + 5}, s{S_BOFF}
    s_add_u32 s{T0 + 5}, s{T0 + 5}, {X1T}
    v_add_u32 v9, s{T0 + 5}, v16
    s_lshl_b32 s{T0 + 5}, s{T0 + 2}, 1
    v_mov_b32 v12, s{T0 + 5}
    global_load_ushort v11, v12, {sp(P_DS)}
    s_lshl_b32 s{T0 + 5}, s{T0}, 2
    s_add_u32 s{T0 + 5}, s{T0 + 5}, {L_MAX + 16}
    v_mov_b32 v12, s{T0 + 5}
    ds_read_b32 v10, v12
    """)
    a(f"""
    v_and_b32 v16, 255, v0
    v_lshlrev_b32 v17, 4, v16
    s_cmp_ge_u32 s{S_WAVE}, 4
    s_cselect_b32 s{T0 + 5}, s{S_CH + 1}, s{S_CH}
    s_cselect_b32 s{T0 + 6}, {DATA_CH}, 0
    s_add_u32 s{T0 + 6}, s{T0 + 6}, {R_X}
    s_lshl_b32 s{T0 + 5}, s{T0 + 5}, 12
    s_add_u32 s{T0 + 7}, s{S_BOFF}, {X1T}
    s_add_u32 s{T0 + 5}, s{T0 + 5}, s{T0 + 7}
    v_add_u32 v20, s{T0 + 5}, v17
    s_lshl_b32 s{T0 + 5}, s{S_CH + 2}, 12
    s_add_u32 s{T0 + 5}, s{T0 + 5}, s{T0 + 7}
    v_add_u32 v22, s{T0 + 5}, v17
    s_mul_i32 s{T0 + 5}, s{S_LAYER}, {STATS_L}
    s_add_u32 s{T0 + 5}, s{T0 + 5}, {STATS}
    v_lshl_add_u32 v21, v0, 4, s{T0 + 5}
    v_add_u32 v23, 8192, v21
    v_lshlrev_b32 v26, 2, v0
    v_add_u32 v26, {LM}, v26
    v_lshlrev_b32 v27, 3, v0
    v_add_u32 v27, {LR}, v27
    v_add_u32 v14, {LM}, v17
    v_lshlrev_b32 v15, 5, v16
    v_add_u32 v15, {LR}, v15
    v_add_u32 v24, s{T0 + 6}, v17
    v_add_u32 v25, {R_X + 2 * DATA_CH}, v17
    s_cmp_ge_u32 s{S_WAVE}, 3
    s_cbranch_scc1 L_b_nz
    v_mov_b32 v28, 0
    v_mov_b32 v29, 0
    v_mov_b32 v30, 0
    v_mov_b32 v31, 0
    s_mul_i32 s{T0 + 5}, s{S_WAVE}, {DATA_CH}
    s_add_u32 s{T0 + 5}, s{T0 + 5}, {R_X}
    v_and_b32 v16, 31, v1
    v_lshl_add_u32 v16, v16, 4, s{T0 + 5}
    ds_write_b128 v16, v[28:31] offset:{D_U}
    v_bfe_u32 v16, v1, 1, 2
    v_mul_u32_u24 v17, 3104, v16
    v_cmp_eq_u32 vcc, 3, v16
    v_subrev_u32 v18, 1024, v17
    v_cndmask_b32 v17, v17, v18, vcc
    v_and_b32 v16, 1, v1
    v_lshl_add_u32 v17, v16, 4, v17
    v_add_u32 v17, s{T0 + 5}, v17
    ds_write_b128 v17, v[28:31] offset:{D_U5}
    """)
    a.label("L_b_nz")
    a(f"""
    s_and_b32 s{T0 + 5}, s2, 7
    s_lshl_b32 s{T0 + 5}, s{T0 + 5}, 12
    s_add_u32 s{T0 + 5}, s{T0 + 5}, s{S_FOFF}
    s_add_u32 s{T0 + 5}, s{T0 + 5}, {FLAGS + ST_U0 * FSTAGE}
    v_and_b32 v16, 31, v1
    v_lshl_add_u32 v16, v16, 7, s{T0 + 5}
    """)


def conv(a):
    a(f"""
    s_cmp_eq_u32 s{S_WAVE}, 0
    s_cbranch_scc0 L_b_np
    """)
    poll(a, [16], 18, pre=PS[2], sleep=PS[3])
    a.label("L_b_np")
    a(f"""
    s_waitcnt vmcnt(0) lgkmcnt(0)
    v_lshlrev_b32 v11, 16, v11
    s_barrier
    """)
    stamp_l(a, 15, 14)
    a(f"""
    global_load_dwordx4 v[48:51], v21, {sp(P_WS)} sc1
    global_load_dwordx4 v[52:55], v23, {sp(P_WS)} sc1
    global_load_dwordx4 v[40:43], v20, {sp(P_WS)} sc1
    s_cmp_ge_u32 s{S_WAVE}, 4
    s_cbranch_scc1 L_b_l1
    global_load_dwordx4 v[44:47], v22, {sp(P_WS)} sc1
    """)
    a.label("L_b_l1")
    a(f"""
    s_max_u32 s{T0 + 5}, s{T0 + 1}, 1
    s_lshl_b32 s{T0 + 5}, s{T0 + 5}, 10
    s_cmp_gt_u32 s{T0 + 5}, 1024
    s_cselect_b32 s{T0 + 5}, s{T0 + 5}, 0
    v_add_u32 v12, s{T0 + 5}, v9
    global_load_dwordx2 v[32:33], v12, {sp(P_WS)} sc1
    global_load_dwordx2 v[34:35], v12, {sp(P_WS)} offset:512 sc1
    s_cbranch_scc1 L_b_l2
    global_load_dwordx2 v[36:37], v12, {sp(P_WS)} offset:1024 sc1
    global_load_dwordx2 v[38:39], v12, {sp(P_WS)} offset:1536 sc1
    """)
    a.label("L_b_l2")
    a("s_waitcnt vmcnt(0)")
    stamp_l(a, 16, 14)
    E4 = range(4)
    su, sq = (lambda e: 48 + 2 * e), (lambda e: 49 + 2 * e)
    for e in E4:
        a(f"v_mul_f32 v{su(e)}, 0x3acccccd, v{su(e)}")
        a(f"v_mul_f32 v{sq(e)}, 0x3acccccd, v{sq(e)}")
    for e in E4:
        a(f"v_fma_f32 v{sq(e)}, -v{su(e)}, v{su(e)}, v{sq(e)}")
    for e in E4:
        a(f"v_max_f32 v{sq(e)}, 0, v{sq(e)}")
    a(f"""
    v_cvt_pk_bf16_f32 v56, v48, v50
    v_cvt_pk_bf16_f32 v57, v52, v54
    ds_write_b32 v26, v56
    ds_write_b32 v26, v57 offset:2048
    """)
    for rnd in range(3):
        a(f"""
        v_cvt_pk_bf16_f32 v58, v{49 if rnd == 0 else 60}, v{51 if rnd == 0 else 61}
        v_cvt_pk_bf16_f32 v59, v{53 if rnd == 0 else 62}, v{55 if rnd == 0 else 63}
        v_lshlrev_b32 v60, 16, v58
        v_and_b32 v61, 0xffff0000, v58
        v_lshlrev_b32 v62, 16, v59
        v_and_b32 v63, 0xffff0000, v59
        """)
        for e in E4:
            a([f"v_add_f32 v{60 + e}, 0x3727c5ac, v{60 + e}", f"v_sqrt_f32 v{60 + e}, v{60 + e}", f"v_rcp_f32 v{60 + e}, v{60 + e}"][rnd])
    a(f"""
    ds_write_b64 v27, v[60:61]
    ds_write_b64 v27, v[62:63] offset:4096
    s_waitcnt lgkmcnt(0)
    s_barrier
    ds_read_b128 v[76:79], v14
    ds_read_b128 v[56:59], v15
    ds_read_b128 v[60:63], v15 offset:16
    s_waitcnt lgkmcnt(2)
    """)
    for e in range(4):
        a(f"v_lshlrev_b32 v{48 + 2 * e}, 16, v{76 + e}")
        a(f"v_and_b32 v{49 + 2 * e}, 0xffff0000, v{76 + e}")
    ln_chunk(a, 40, 80, 48, 56, 64)
    a(f"""
    ds_write_b128 v24, v[80:83] offset:{D_U + 512}
    s_cmp_ge_u32 s{S_WAVE}, 4
    s_cbranch_scc1 L_b_u
    """)
    ln_chunk(a, 44, 88, 48, 56, 64)
    a(f"ds_write_b128 v25, v[88:91] offset:{D_U + 512}")
    a.label("L_b_u")
    a(f"""
    s_and_b32 s{T0 + 8}, s{S_WAVE}, 3
    s_waitcnt lgkmcnt(0)
    s_barrier
    s_cmp_eq_u32 s{T0 + 8}, 3
    s_cbranch_scc1 L_b_go
    ds_read_b128 v[76:79], v24 offset:{D_U + 496}
    ds_read_b128 v[84:87], v25 offset:{D_U + 496}
    s_waitcnt lgkmcnt(1)
    """)
    box_chunk(a, 76, 24)
    a(f"""
    s_cmp_ge_u32 s{S_WAVE}, 4
    s_cbranch_scc1 L_b_go
    s_waitcnt lgkmcnt(0)
    """)
    box_chunk(a, 84, 25)
    a.label("L_b_go")
    a(f"""
    s_waitcnt lgkmcnt(0)
    s_barrier
    """)
    stamp_l(a, 17, 14)
    a(f"""
    s_cmp_eq_u32 s{T0 + 1}, 0
    s_cbranch_scc1 L_b_done
    s_cmp_eq_u32 s{T0 + 1}, 2
    s_cbranch_scc1 L_b_p2
    s_cmp_eq_u32 s{T0 + 1}, 3
    s_cbranch_scc1 L_b_p3
    """)
    conv_prog(a, 1)
    a.label("L_b_p2")
    conv_prog(a, 2)
    a.label("L_b_p3")
    conv_prog(a, 3)
    a.label("L_b_done")
    stamp_l(a, 18, 14)


def publish_wg(a, slot_code, lbl, va, vd):
    a(slot_code)
    a(f"""
    s_waitcnt vmcnt(0)
    s_barrier
    s_cmp_eq_u32 s{S_WAVE}, 0
    s_cbranch_scc0 {lbl}
    """)
    publish(a, T0 + 2, va, vd)
    a.label(lbl)


def rest(a, dump_lds):
    post_gemm(a)
    if STOP in ("o", "o1"):
        a(f"s_cmp_eq_u32 s{S_LAYER}, {0 if STOP == 'o' else 1}")
        a("s_cbranch_scc1 L_fin")
    a2(a)
    conv_setup(a)
    publish_wg(a, f"""
    s_lshl_b32 s{T0 + 2}, s{S_HG}, 5
    s_add_u32 s{T0 + 2}, s{T0 + 2}, s{S_RB}
    s_lshl_b32 s{T0 + 2}, s{T0 + 2}, 7
    s_add_u32 s{T0 + 2}, s{T0 + 2}, s{S_FOFF}
    s_add_u32 s{T0 + 2}, s{T0 + 2}, {FLAGS + ST_U0 * FSTAGE}
    """, "L_u_np", 17, 28)
    stamp_l(a, 14, 14)
    if STOP in ("u", "u1"):
        a(f"s_cmp_eq_u32 s{S_LAYER}, {0 if STOP == 'u' else 1}")
        a("s_cbranch_scc1 L_fin")
    if STOP == "taps":
        dump_lds(a, R_T, 49152, DBG)
        a("s_branch L_fin")
    conv(a)
    a(f"""
    s_cmp_eq_u32 s{S_LAYER}, 1
    s_cbranch_scc1 L_final
    """)
    g_a1.a1_addresses(a, False)
    g_a1.x2_patterns(a)
    a(f"""
    v_lshlrev_b32 v32, 7, v1
    v_add_u32 v32, {FLAGS + ST_X0 * FSTAGE}, v32
    v_add_u32 v33, 8192, v32
    v_add_u32 v34, 16384, v32
    v_add_u32 v35, 24576, v32
    s_mov_b32 s{S_LAYER}, 1
    s_mov_b32 s{S_FOFF}, {3 * FSTAGE}
    s_mov_b32 s{S_BOFF}, {BUF}
    """)
    XC = int(os.environ.get("XC", "0"))
    if XC:
        a(f"""
        s_and_b32 s{T0 + 2}, s{S_SLOT}, {XC - 1}
        s_lshl_b32 s{T0 + 2}, s{T0 + 2}, 7
        s_add_u32 s{T0 + 2}, s{T0 + 2}, {CNT}
        v_mov_b32 v24, s{T0 + 2}
        v_mov_b32 v25, 1
        v_and_b32 v32, {XC - 1}, v1
        v_lshlrev_b32 v32, 7, v32
        v_add_u32 v32, {CNT}, v32
        s_waitcnt vmcnt(0)
        s_barrier
        s_cmp_eq_u32 s{S_WAVE}, 0
        s_cbranch_scc0 L_x_go
        s_mov_b64 exec, 1
        global_atomic_add v24, v25, {sp(P_WS)}
        s_mov_b64 exec, -1
        """)
        stamp(a, 19)
        a(f"""
        s_mov_b32 s{T0 + 15}, 0
        s_sleep {PS[0]}
        """)
        a.label("L_xc")
        a(f"""
        global_load_dword v36, v32, {sp(P_WS)} sc1
        s_add_u32 s{T0 + 15}, s{T0 + 15}, 1
        s_waitcnt vmcnt(0)
        v_cmp_ne_u32 vcc, {256 // XC}, v36
        s_cmp_gt_u32 s{T0 + 15}, {SPIN_LIMIT}
        s_cbranch_scc1 L_end
        s_cbranch_vccnz L_xc
        s_branch L_x_go
        """)
    publish_wg(a, f"""
    s_lshl_b32 s{T0 + 2}, s{S_SLOT}, 7
    s_add_u32 s{T0 + 2}, s{T0 + 2}, {FLAGS + ST_X0 * FSTAGE}
    """, "L_x_np", 24, 28)
    stamp(a, 19)
    if STOP == "x2":
        a("s_branch L_fin")
    a(f"""
    s_cmp_eq_u32 s{S_WAVE}, 0
    s_cbranch_scc0 L_x_go
    """)
    poll(a, [32, 33, 34, 35], 36, pre=PS[0], sleep=PS[1])
    a.label("L_x_go")
    a("s_barrier")
    stamp(a, 33)
    if os.environ.get("GST"):
        stamp(a, 0)
    g_a1.x2_first(a)
    g_a1.gemm_all(a, False)
    final(a)


def final(a):
    a.label("L_final")
    a(f"""
    s_mul_i32 s{T0}, s2, 205
    s_lshr_b32 s{T0}, s{T0}, 11
    s_mul_i32 s{T0 + 1}, s{T0}, 10
    s_sub_u32 s{T0 + 1}, s2, s{T0 + 1}
    s_lshl_b32 s{T0 + 2}, s{T0 + 1}, 18
    s_lshl_b32 s{T0 + 3}, s{T0}, 8
    s_add_u32 s{T0 + 2}, s{T0 + 2}, s{T0 + 3}
    s_lshl_b32 s{T0 + 3}, s{S_WAVE}, 15
    s_add_u32 s{T0 + 2}, s{T0 + 2}, s{T0 + 3}
    s_add_u32 s{T0 + 2}, s{T0 + 2}, {X2T + BUF}
    v_and_b32 v2, 15, v1
    v_lshrrev_b32 v3, 4, v1
    v_lshlrev_b32 v4, 12, v3
    v_lshl_add_u32 v4, v2, 4, v4
    v_add_u32 v4, s{T0 + 2}, v4
    v_add_u32 v5, 16384, v4
    s_lshl_b32 s{T0 + 2}, s{S_WAVE}, 5
    s_add_u32 s{T0 + 2}, s{T0 + 2}, {R_X}
    v_lshrrev_b32 v6, 2, v2
    v_lshl_add_u32 v6, v3, 3, v6
    v_lshlrev_b32 v6, 8, v6
    v_and_b32 v7, 3, v1
    v_lshl_add_u32 v6, v7, 3, v6
    v_add_u32 v6, s{T0 + 2}, v6
    s_lshl_b32 s{T0 + 2}, s{T0}, 3
    s_add_u32 s{T0 + 2}, s{T0 + 2}, s{S_WAVE}
    s_mul_i32 s{T0 + 2}, s{T0 + 2}, {16 * 1280}
    s_lshl_b32 s{T0 + 3}, s{T0 + 1}, 7
    s_add_u32 s{T0 + 2}, s{T0 + 2}, s{T0 + 3}
    v_and_b32 v7, 7, v2
    v_mul_u32_u24 v7, 1280, v7
    v_lshl_add_u32 v7, v3, 4, v7
    v_and_b32 v9, 8, v2
    v_lshl_add_u32 v7, v9, 3, v7
    v_add_u32 v7, s{T0 + 2}, v7
    v_add_u32 v9, {8 * 1280}, v7
    s_lshl_b32 s{T0 + 4}, s{S_WAVE}, 11
    s_mul_i32 s{T0 + 2}, s{T0 + 1}, {64 * 205}
    s_lshr_b32 s{T0 + 2}, s{T0 + 2}, 10
    s_lshl_b32 s{T0 + 2}, s{T0 + 2}, 1
    v_min_u32 v8, 27, v1
    v_add_u32 v8, s{T0 + 2}, v8
    v_min_u32 v8, 255, v8
    v_lshlrev_b32 v8, 7, v8
    v_add_u32 v8, {FLAGS + ST_X1 * FSTAGE}, v8
    """)
    publish_wg(a, f"""
    s_lshl_b32 s{T0 + 2}, s{S_SLOT}, 7
    s_add_u32 s{T0 + 2}, s{T0 + 2}, {FLAGS + ST_X1 * FSTAGE}
    """, "L_f_np", 24, 28)
    stamp(a, 34)
    a(f"""
    s_cmp_ge_u32 s2, 160
    s_cbranch_scc1 L_fin
    s_cmp_eq_u32 s{S_WAVE}, 0
    s_cbranch_scc0 L_f_go
    """)
    poll(a, [8], 10, pre=PS[2], sleep=PS[3])
    a.label("L_f_go")
    a(f"""
    s_barrier
    s_add_u32 m0, s{T0 + 4}, {R_X}
    s_nop 0
    global_load_lds_dwordx4 v4, {sp(P_WS)} sc1
    s_add_u32 m0, s{T0 + 4}, {R_X + 1024}
    s_nop 0
    global_load_lds_dwordx4 v5, {sp(P_WS)} sc1
    s_waitcnt vmcnt(0)
    s_barrier
    ds_read_b64_tr_b16 v[12:13], v6
    ds_read_b64_tr_b16 v[14:15], v6 offset:1024
    ds_read_b64_tr_b16 v[16:17], v6 offset:8192
    ds_read_b64_tr_b16 v[18:19], v6 offset:9216
    s_waitcnt lgkmcnt(0)
    """)
    for r in range(4):
        a(f"v_mov_b32 v{20 + r}, v{12 + r}")
    for r in range(4):
        a(f"v_mov_b32_dpp v{12 + r}, v{16 + r} row_ror:8 row_mask:0xf bank_mask:0xc")
    for r in range(4):
        a(f"v_mov_b32_dpp v{16 + r}, v{20 + r} row_ror:8 row_mask:0xf bank_mask:0x3")
    a(f"""
    global_store_dwordx4 v7, v[12:15], {sp(P_OUT)} {os.environ.get("FST", "")}
    global_store_dwordx4 v9, v[16:19], {sp(P_OUT)} {os.environ.get("FST", "")}
    """)
    stamp(a, 35)
```

```python
from mcommon import *
import struct

fbits = lambda x: struct.unpack("<I", struct.pack("<f", float(x)))[0]

PR = 240
PK = 192
XP = [int(v) for v in os.environ.get('XP', '1,1,3,5').split(',')]


MAPS = {
    "84": f"""s_and_b32 s{S_SK}, s{T0 + 1}, 3
    s_lshl_b32 s{S_RB}, s{T0}, 2
    s_add_u32 s{S_RB}, s{S_RB}, s{S_SK}
    s_lshr_b32 s{S_HG}, s{T0 + 1}, 2""",
    "48": f"""s_and_b32 s{S_SK}, s{T0 + 1}, 3
    s_lshr_b32 s{S_RB}, s{T0}, 1
    s_lshl_b32 s{S_RB}, s{S_RB}, 3
    s_and_b32 s{S_HG}, s{T0 + 1}, 7
    s_add_u32 s{S_RB}, s{S_RB}, s{S_HG}
    s_and_b32 s{S_HG}, s{T0}, 1
    s_lshl_b32 s{S_HG}, s{S_HG}, 2
    s_lshr_b32 s{T0 + 2}, s{T0 + 1}, 3
    s_add_u32 s{S_HG}, s{S_HG}, s{T0 + 2}""",
}


def entry(a):
    if PROFILE:
        a("s_memrealtime s[100:101]")
    a(f"""
    s_cmp_ge_u32 s2, 256
    s_cbranch_scc1 L_end
    s_load_dwordx16 s[8:23], s[0:1], 0
    s_load_dwordx8 s[24:31], s[0:1], 64
    s_load_dwordx2 s[32:33], s[0:1], 96
    v_lshrrev_b32 v2, 6, v0
    v_and_b32 v1, 63, v0
    v_readfirstlane_b32 s{S_WAVE}, v2
    s_getpc_b64 {sp(T0 + 8)}
    """)
    a.label("L_pcref")
    if os.environ.get("NOPF") is None:
        a(f"""
        s_lshr_b32 s{T0 + 5}, s2, 3
        s_cmp_eq_u32 s{S_WAVE}, 7
        s_cbranch_scc0 L_nopf
        v_and_b32 v2, 31, v1
        v_lshl_add_u32 v2, v2, 5, s{T0 + 5}
        v_lshlrev_b32 v2, 7, v2
        v_min_u32 v2, L_code_end-L_pcref-4, v2
        global_load_dword v251, v2, {sp(T0 + 8)}
        """)
        a.label("L_nopf")
    a(f"""
    s_and_b32 s{T0}, s2, 7
    s_lshr_b32 s{T0 + 1}, s2, 3
    {MAPS[os.environ.get("MAP", "48")]}
    s_and_b32 s{S_ODD}, s{T0 + 1}, 1
    s_lshr_b32 s{T0 + 1}, s{T0 + 1}, 1
    s_lshl_b32 s{T0}, s{T0}, 4
    s_add_u32 s{T0}, s{T0}, s{T0 + 1}
    s_mul_i32 s{T0}, s{T0}, 5
    s_mul_i32 s{T0 + 1}, s{S_ODD}, 3
    s_add_u32 s{S_CH}, s{T0}, s{T0 + 1}
    s_add_u32 s{S_CH + 1}, s{S_CH}, 1
    s_add_u32 s{S_CH + 2}, s{T0}, 2
    s_mov_b32 s{S_LAYER}, 0
    s_mov_b32 s{S_FOFF}, 0
    s_mov_b32 s{S_BOFF}, 0
    """)


UB = 4608
RS_ = 288


def ssm_unit(a, s_blk, hooks={}):
    PW, T, CV, BF, ACC = 4, 16, 52, 68, 84
    W1, W8, W128, W256, W512, W1024 = (PW + 2 * i for i in range(6))

    def hook(k):
        if os.environ.get("UST") and hooks:
            stamp(a, 20 + 2 * k)
        if k in hooks:
            hooks[k]()
            a(f"s_mov_b32 m0, s{s_blk}")
        if os.environ.get("UST") and hooks:
            stamp(a, 21 + 2 * k)

    a(f"""
    v_lshlrev_b32 v{CV}, 16, v{PR}
    v_lshlrev_b32 v{CV + 4}, 16, v{PR + 4}
    v_mul_f32 v{CV}, {LOG2E}, v{CV}
    v_mul_f32 v{CV + 4}, {LOG2E}, v{CV + 4}
    v_exp_f32 v{CV}, v{CV}
    v_exp_f32 v{CV + 4}, v{CV + 4}
    v_lshlrev_b32 v{CV + 1}, 16, v{PR + 1}
    v_lshlrev_b32 v{CV + 2}, 16, v{PR + 2}
    v_lshlrev_b32 v{CV + 3}, 16, v{PR + 3}
    v_cvt_pk_bf16_f32 v{CV}, v{CV}, v{CV + 4}
    v_and_b32 v3, 15, v1
    v_mul_u32_u24 v3, {RS_}, v3
    v_and_b32 v2, 0x30, v1
    v_add3_u32 v3, v3, v2, s{s_blk}
    s_mov_b32 m0, s{s_blk}
    v_and_b32 v{CV + 4}, 0xffff0000, v{CV}
    v_lshlrev_b32 v{CV}, 16, v{CV}
    v_mul_f32 v{CV}, v{CV}, v{CV + 4}
    v_mul_f32 v{CV + 1}, v{CV + 1}, v{CV + 4}
    v_mul_f32 v{ACC}, v{CV + 2}, v{CV + 4}
    v_mul_f32 v{ACC + 1}, v{CV + 3}, v{CV + 4}
    v_mul_f32 v{CV}, {LOG2E ^ 0x80000000}, v{CV}
    v_mul_f32 v{CV + 1}, {INV2PI}, v{CV + 1}
    v_mul_f32 v{ACC}, 0x44000000, v{ACC}
    v_mul_f32 v{ACC + 1}, 0x44000000, v{ACC + 1}
    """)
    POW = [1, 8, 128, 256, 512, 1024]
    M, PH = CV + 2, CV + 8
    for q, pw in enumerate(POW):
        a(f"v_mul_f32 v{M + q}, {fbits(pw)}, v{CV}")
        a(f"v_mul_f32 v{PH + q}, {fbits(pw)}, v{CV + 1}")
    for q in range(6):
        a(f"v_exp_f32 v{M + q}, v{M + q}")
        a(f"v_fract_f32 v{PH + q}, v{PH + q}")
    for q in range(6):
        a(f"v_cos_f32 v{PW + 2 * q}, v{PH + q}")
        a(f"v_sin_f32 v{PW + 2 * q + 1}, v{PH + q}")
    for q in range(6):
        a(f"v_mul_f32 v{PW + 2 * q}, v{PW + 2 * q}, v{M + q}")
        a(f"v_mul_f32 v{PW + 2 * q + 1}, v{PW + 2 * q + 1}, v{M + q}")
    hook(0)

    def cmul(d, z, w):
        return [f"v_pk_mul_f32 v[{d}:{d + 1}], v[{z}:{z + 1}], v[{w}:{w + 1}] op_sel:[0,0] op_sel_hi:[1,0]",
                f"v_pk_fma_f32 v[{d}:{d + 1}], v[{z}:{z + 1}], v[{w}:{w + 1}], v[{d}:{d + 1}] op_sel:[1,1,0] op_sel_hi:[0,1,1] neg_lo:[1,0,0]"]

    def par(seqs):
        for i in range(2):
            for s in seqs:
                a(s[i])

    def table(regs, neg_im):
        n = "-" if neg_im else ""
        for i, r in enumerate(regs):
            a(f"v_cvt_pk_f16_f32 v{CV + i}, v{r}, {n}v{r + 1}")
        for i, r in enumerate(regs):
            a(f"ds_write_addtid_b32 v{CV + i} offset:{RS_ * i}")

    def frags(dst):
        a("s_waitcnt lgkmcnt(0)")
        for ks in range(4):
            a(f"ds_read_b128 {vq(dst + 4 * ks)}, v3 offset:{64 * ks}")

    E = lambda j: T + 2 * j
    a(f"""
    v_mov_b32 v{E(0)}, 1.0
    v_mov_b32 v{E(0) + 1}, 0
    v_mov_b32 v{E(1)}, v{W8}
    v_mov_b32 v{E(1) + 1}, v{W8 + 1}
    """)
    V2, V4 = T + 32, T + 34
    par([cmul(E(2), W8, W8), cmul(V2, W1, W1)])
    par([cmul(E(3), E(2), W8), cmul(E(4), E(2), E(2)), cmul(V4, V2, V2)])
    par([cmul(E(j), E(j - 4), E(4)) for j in (5, 6, 7, 8)])
    par([cmul(E(j), E(j - 4), E(4)) for j in (9, 10, 11, 12)])
    par([cmul(E(j), E(j - 4), E(4)) for j in (13, 14, 15)])
    table([E(j) for j in range(16)], True)
    X = lambda i: T + 2 * i
    a(f"v_mov_b32 v{X(0)}, v{ACC}")
    a(f"v_mov_b32 v{X(0) + 1}, v{ACC + 1}")
    par([cmul(X(1), X(0), W1), cmul(X(2), X(0), V2), cmul(X(4), X(0), V4), cmul(X(8), X(0), W128)])
    frags(BF)
    par([cmul(X(3), X(1), V2), cmul(X(5), X(1), V4), cmul(X(6), X(2), V4), cmul(X(9), X(1), W128), cmul(X(10), X(2), W128), cmul(X(12), X(4), W128)])
    par([cmul(X(7), X(3), V4), cmul(X(11), X(3), W128), cmul(X(13), X(5), W128), cmul(X(14), X(6), W128)])
    par([cmul(X(15), X(7), W128)])
    hook(1)
    a("s_waitcnt lgkmcnt(0)")
    table([X(i) for i in range(16)], False)

    def mm(tau):
        for ks in range(4):
            c = vq(ACC + 4 * tau)
            a(f"v_mfma_f32_16x16x32_f16 {c}, {vq(CV + 4 * ks)}, {vq(BF + 4 * ks)}, {c if ks else 0}")

    src1 = [0, 2, 4, 6, 8, 10, 12, 14]
    dst1 = [1, 3, 5, 7, 9, 11, 13, 15]
    par([cmul(X(d), X(s), W256) for s, d in zip(src1, dst1)])
    frags(CV)
    par([cmul(X(d), X(s), W512) for s, d in zip([0, 4, 8, 12], [2, 6, 10, 14])])
    par([cmul(X(d), X(s), W256) for s, d in zip([2, 6, 10, 14], [4, 12, 16, 17])])
    hook(2)
    a("s_waitcnt lgkmcnt(0)")
    mm(0)
    table([X(i) for i in dst1 + [2, 6, 10, 14, 4, 12, 16, 17]], False)
    par([cmul(X(1), X(0), W1024), cmul(X(3), X(8), W1024)])
    frags(CV)
    par([cmul(X(5), X(1), W256), cmul(X(7), X(3), W256), cmul(X(9), X(1), W512), cmul(X(11), X(3), W512), cmul(X(2), X(1), W1024)])
    par([cmul(X(13), X(9), W256), cmul(X(15), X(11), W256)])
    hook(3)
    a("s_waitcnt lgkmcnt(0)")
    mm(1)
    table([X(i) for i in (1, 3, 5, 7, 9, 11, 13, 15, 2)], False)
    frags(CV)
    a(f"""
    v_lshl_add_u32 v2, v1, 4, s{s_blk}
    v_mov_b32 v4, 0
    s_waitcnt lgkmcnt(0)
    """)
    mm(2)
    a(f"""
    ds_write_b128 v2, {vq(ACC)}
    ds_write_b128 v2, {vq(ACC + 4)} offset:1024
    ds_write_addtid_b32 v4 offset:3072
    ds_write_b128 v2, {vq(ACC + 8)} offset:2048
    """)


def pack_decode(a):
    a(f"""
    s_min_u32 s{T0 + 3}, s2, 239
    s_mul_i32 s{T0 + 4}, s{T0 + 3}, 21846
    s_lshr_b32 s{T0 + 4}, s{T0 + 4}, 16
    s_mul_i32 s{T0 + 5}, s{T0 + 4}, 3
    s_sub_u32 s{T0 + 5}, s{T0 + 3}, s{T0 + 5}
    s_mul_i32 s{T0 + 8}, s{T0 + 4}, {8 * 3840}
    s_mul_i32 s{T0 + 6}, s{T0 + 5}, 1280
    s_add_u32 s{T0 + 8}, s{T0 + 8}, s{T0 + 6}
    s_mul_i32 s{T0 + 6}, s{S_WAVE}, 320
    s_add_u32 s{T0 + 8}, s{T0 + 8}, s{T0 + 6}
    v_min_u32 v4, 39, v1
    v_lshlrev_b32 v24, 2, v4
    v_add_u32 v25, {2 * 3840}, v24
    v_add_u32 v26, {4 * 3840}, v24
    v_add_u32 v27, {6 * 3840}, v24
    s_cmp_eq_u32 s{T0 + 5}, 1
    s_cselect_b32 s{T0 + 6}, 32, 0
    v_add_u32 v4, s{T0 + 6}, v4
    v_subrev_u32 v5, 40, v4
    v_min_u32 v4, v4, v5
    s_mul_i32 s{T0 + 6}, s{T0 + 5}, 12
    s_mov_b32 s{T0 + 12}, {0x620 | (0x784 << 12) | ((0xeca & 0xff) << 24)}
    s_mov_b32 s{T0 + 13}, {0xeca >> 8}
    s_lshr_b64 {sp(T0 + 12)}, {sp(T0 + 12)}, s{T0 + 6}
    v_lshrrev_b32 v5, 4, v4
    v_lshlrev_b32 v6, 2, v5
    v_mov_b32 v7, s{T0 + 12}
    v_bfe_u32 v6, v7, v6, 4
    v_mul_u32_u24 v6, 20480, v6
    v_and_b32 v4, 15, v4
    v_lshl_add_u32 v6, v4, 4, v6
    s_mul_i32 s{T0 + 6}, s{S_WAVE}, {2 * 307200}
    s_lshl_b32 s{T0 + 7}, s{T0 + 4}, 8
    s_add_u32 s{T0 + 6}, s{T0 + 6}, s{T0 + 7}
    s_add_u32 s{T0 + 6}, s{T0 + 6}, {WP}
    v_add_u32 v10, s{T0 + 6}, v6
    v_cmp_eq_u32 vcc, 2, v5
    v_mov_b32 v6, 20480
    v_mov_b32 v7, 128
    v_cndmask_b32 v6, v6, v7, vcc
    v_add_u32 v11, v10, v6
    v_add_u32 v12, 307200, v10
    v_add_u32 v13, 307200, v11
    """)


def pack_loads(a):
    add64(a, T0 + 12, P_WQ, f"s{T0 + 8}")
    for i in range(2):
        for e in range(8):
            a(f"global_load_dword v{PK + 16 * i + e}, v{24 + e // 2}, {sp(T0 + 12)} offset:{3840 * (e % 2) + 160 * i}")


def param_addr(a, s_ch, s_third):
    a(f"""
    s_mul_i32 s{T0 + 12}, s{s_ch}, 384
    s_lshl_b32 s{T0 + 13}, s{s_third}, 7
    s_add_u32 s{T0 + 12}, s{T0 + 12}, s{T0 + 13}
    v_lshl_add_u32 v2, v1, 1, s{T0 + 12}
    s_lshl_b32 s{T0 + 13}, s{s_ch}, 1
    v_mov_b32 v3, s{T0 + 13}
    """)


def param_loads(a):
    a(f"""
    global_load_ushort v{PR}, v2, {sp(P_LA)}
    global_load_ushort v{PR + 4}, v3, {sp(P_LD)}
    global_load_ushort v{PR + 1}, v2, {sp(P_AI)}
    global_load_ushort v{PR + 2}, v2, {sp(P_CR)}
    global_load_ushort v{PR + 3}, v2, {sp(P_CI)}
    """)


WC = 184
XB = 246


def x_dma(a, n0, n1):
    for n in range(n0, n1):
        a(f"""
        s_and_b32 s{T0 + 5}, s{S_HG}, 3
        s_add_u32 s{T0 + 5}, s{T0 + 5}, {n}
        s_sub_u32 s{T0 + 6}, s{T0 + 5}, 5
        s_min_u32 s{T0 + 5}, s{T0 + 5}, s{T0 + 6}
        s_lshl_b32 s{T0 + 6}, s{S_RB}, 2
        s_add_u32 s{T0 + 6}, s{T0 + 6}, s{T0 + 5}
        s_max_u32 s{T0 + 6}, s{T0 + 6}, 1
        s_sub_u32 s{T0 + 6}, s{T0 + 6}, 1
        s_mul_i32 s{T0 + 6}, s{T0 + 6}, 20480
        s_mul_i32 s{T0 + 5}, s{T0 + 5}, 20480
        s_lshl_b32 s{T0 + 7}, s{S_WAVE}, 10
        s_add_u32 s{T0 + 5}, s{T0 + 5}, s{T0 + 7}
        """)
        add64(a, T0 + 8, P_X, f"s{T0 + 6}")
        for k in range(5):
            a(f"s_add_u32 m0, s{T0 + 5}, {R_X - 4096 + 4096 * k}")
            a(f"global_load_lds_dwordx4 v{XB + k}, {sp(T0 + 8)}")


def start(a, pre_w, prepass):
    entry(a)
    a(f"""
    s_mul_i32 s{T0}, s{S_WAVE}, 11
    s_lshr_b32 s{T0}, s{T0}, 5
    s_mul_i32 s{T0 + 1}, s{T0}, 3
    s_sub_u32 s{T0 + 1}, s{S_WAVE}, s{T0 + 1}
    s_cmp_eq_u32 s{T0}, 1
    s_cselect_b32 s{T0 + 2}, s{S_CH + 1}, s{S_CH}
    s_cmp_eq_u32 s{T0}, 2
    s_cselect_b32 s{T0 + 2}, s{S_CH + 2}, s{T0 + 2}
    s_cselect_b32 s{T0 + 3}, s{S_ODD}, 0
    s_cmp_eq_u32 s{T0 + 3}, 1
    s_cselect_b32 s{T0 + 1}, 2, s{T0 + 1}
    s_mul_i32 s{T0 + 10}, s{T0}, 3
    s_add_u32 s{T0 + 10}, s{T0 + 10}, s{T0 + 1}
    v_mov_b32 v16, 0
    v_mov_b32 v17, 0
    v_mov_b32 v18, 0
    v_mov_b32 v19, 0
    """)
    param_addr(a, T0 + 2, T0 + 1)
    a(f"""
    s_cmp_ge_u32 s{S_WAVE}, 4
    s_cbranch_scc1 L_st_x
    """)
    pack_decode(a)
    for k in range(5):
        a(f"v_mov_b32 v{XB + k}, 0")
    slab_offsets(a, 32, 1280)
    a(f"""
    s_mul_i32 s{T0 + 4}, s2, 2185
    s_lshr_b32 s{T0 + 4}, s{T0 + 4}, 16
    s_mul_i32 s{T0 + 5}, s{T0 + 4}, 30
    s_sub_u32 s{T0 + 5}, s2, s{T0 + 5}
    s_cmp_lt_u32 s{T0 + 5}, 20
    s_cselect_b32 s{T0}, 1, 0
    s_cmp_lt_u32 s2, 240
    s_cselect_b32 s{T0}, s{T0}, 0
    s_cmp_eq_u32 s{S_WAVE}, 3
    s_cselect_b32 s{T0}, s{T0}, 0
    s_mul_i32 s{T0 + 1}, s{T0 + 5}, {32 * 1280}
    s_mul_i32 s{T0 + 6}, s{T0 + 4}, 160
    s_add_u32 s{T0 + 1}, s{T0 + 1}, s{T0 + 6}
    s_mul_i32 s{T0 + 4}, s{T0 + 4}, 102400
    s_mul_i32 s{T0 + 5}, s{T0 + 5}, 5120
    s_add_u32 s{T0 + 4}, s{T0 + 4}, s{T0 + 5}
    s_add_u32 s{T0 + 4}, s{T0 + 4}, {WOP + 1024}
    v_lshl_add_u32 v{WC + 5}, v1, 4, s{T0 + 4}
    """)
    for e in range(5):
        a(f"v_add_u32 v{WC + e}, s{T0 + 1}, v{32 + e}")
    a(f"""
    s_lshl_b32 s{T0 + 4}, s{S_RB}, 9
    s_add_u32 s{T0 + 4}, s{T0 + 4}, {STATS}
    v_and_b32 v6, 31, v1
    v_lshl_add_u32 v6, v6, 4, s{T0 + 4}
    v_lshrrev_b32 v7, 5, v1
    v_lshl_add_u32 v6, v7, 14, v6
    v_and_b32 v8, 3, v1
    v_lshlrev_b32 v8, 4, v8
    v_add_u32 v8, {L_CTR}, v8
    v_mov_b32 v9, {L_MAX}
    ds_write_b128 v8, v[16:19]
    ds_write_b128 v9, v[16:19]
    s_waitcnt lgkmcnt(0)
    """)
    stamp_init(a)
    stamp(a, 0)
    a(f"""
    s_cmp_ge_u32 s2, 240
    s_cbranch_scc1 L_st_nopack
    """)
    pack_loads(a)
    a.label("L_st_nopack")
    param_loads(a)
    a(f"""
    global_load_dwordx2 v[20:21], v16, {sp(P_WS)} sc1
    s_cmp_eq_u32 s{S_WAVE}, 2
    s_cbranch_scc0 L_st_b0
    s_cmp_eq_u32 s{S_HG}, 0
    s_cbranch_scc0 L_st_nz
    global_store_dwordx4 v6, v[16:19], {sp(P_WS)} sc1
    """)
    a.label("L_st_nz")
    a(f"""
    s_cmp_eq_u32 s2, 255
    s_cbranch_scc0 L_st_b0
    v_and_b32 v6, 7, v1
    v_lshlrev_b32 v6, 4, v6
    v_add_u32 v6, {X2T - 128}, v6
    s_mov_b64 exec, 0xff
    global_store_dwordx4 v6, v[16:19], {sp(P_WS)} sc1
    s_mov_b64 exec, -1
    v_lshlrev_b32 v6, 4, v1
    v_add_u32 v6, {CNT}, v6
    global_store_dwordx4 v6, v[16:19], {sp(P_WS)} sc1
    global_store_dwordx4 v6, v[16:19], {sp(P_WS)} offset:1024 sc1
    """)
    a.label("L_st_b0")
    a(f"""
    s_barrier
    s_waitcnt vmcnt(0)
    s_cmp_ge_u32 s2, 240
    s_cbranch_scc1 L_st_unit
    s_mov_b32 s{T0 + 8}, 0x05040100
    s_mov_b32 s{T0 + 9}, 0x07060302
    s_mov_b32 exec_hi, 0xff
    """)
    for i in range(2):
        R = PK + 16 * i
        for h in range(2):
            for d in range(4):
                a(f"v_perm_b32 v{R + 8 + 4 * h + d}, v{R + 2 * d + 1}, v{R + 2 * d}, s{T0 + 8 + h}")
            a(f"global_store_dwordx4 v{10 + 2 * i + h}, {vq(R + 8 + 4 * h)}, {sp(P_WS)} sc1")
    a("s_mov_b64 exec, -1")
    a("s_branch L_st_unit")
    a.label("L_st_x")
    a(f"s_lshl_b32 s{T0 + 4}, s{S_SK}, 2")
    a(f"s_mov_b32 s{T0}, 0")
    for k in range(6):
        a(f"v_mov_b32 v{WC + k}, {WOP + 1024}")
    for k in range(5):
        a(f"""
        v_add_u32 v6, {256 * k - 256}, v0
        v_mul_u32_u24 v7, 52429, v6
        v_lshrrev_b32 v7, 22, v7
        v_mul_u32_u24 v8, 80, v7
        v_sub_u32 v8, v6, v8
        v_xor_b32 v8, v8, v7
        v_xor_b32 v8, s{T0 + 4}, v8
        v_mul_u32_u24 v7, 1280, v7
        v_lshl_add_u32 v{XB + k}, v8, 4, v7
        """)
    a("s_waitcnt lgkmcnt(0)")
    stamp_init(a)
    stamp(a, 0)
    param_loads(a)
    a(f"""
    global_load_dwordx2 v[20:21], v16, {sp(P_WS)} sc1
    s_barrier
    """)
    x_dma(a, 0, XP[0])
    a(f"s_waitcnt vmcnt({5 * XP[0]})")
    x_dma(a, XP[0], XP[1])
    a.label("L_st_unit")
    a(f"""
    s_and_b32 s{S_SLOT}, s2, 7
    s_lshl_b32 s{S_SLOT}, s{S_SLOT}, 5
    s_lshr_b32 s{S_SLOT + 1}, s2, 3
    s_add_u32 s{S_SLOT}, s{S_SLOT}, s{S_SLOT + 1}
    v_readfirstlane_b32 s{TAG}, v20
    v_readfirstlane_b32 s{TAG + 1}, v21
    s_add_u32 s{TAG}, s{TAG}, 1
    s_addc_u32 s{TAG + 1}, s{TAG + 1}, 0
    """)
    stamp(a, 1)

    def xpart(n0, n1, last):
        def f():
            L = uid("xs")
            a(f"""
            s_cmp_lt_u32 s{S_WAVE}, 4
            s_cbranch_scc1 {L}
            """)
            x_dma(a, n0, n1)
            a.label(L)
        return f

    def flag():
        a(f"""
        s_cmp_ge_u32 s{S_WAVE}, 4
        s_cbranch_scc1 L_st_mid
        """)
        stamp(a, 30)
        a("s_waitcnt vmcnt(0)")
        stamp(a, 31)
        lds_last(a, L_CTR, 4, PK, PK + 2)
        a(f"""
        s_cbranch_scc0 L_st_mid
        s_lshl_b32 s{T0 + 8}, s2, 7
        s_add_u32 s{T0 + 8}, s{T0 + 8}, {FLAGS + ST_W * FSTAGE}
        """)
        publish(a, T0 + 8, PK, PK + 4)
        a.label("L_st_mid")
        a(f"""
        s_cmp_eq_u32 s{T0}, 0
        s_cbranch_scc1 L_st_mid2
        """)
        for e in range(5):
            a(f"global_load_dwordx4 {vq(160 + 4 * e)}, v{WC + e}, {sp(P_WO)}")
        a.label("L_st_mid2")

    a(f"""
    s_cmp_eq_u32 s{S_WAVE}, 7
    s_cselect_b32 s{T0 + 4}, s{S_ODD}, 0
    s_sub_u32 s{T0 + 4}, s{T0 + 10}, s{T0 + 4}
    s_mul_i32 s{T0 + 4}, s{T0 + 4}, {UB}
    s_add_u32 s{T0 + 4}, s{T0 + 4}, {R_T}
    """)
    hk = {1: flag}
    XH = [int(h) for h in os.environ.get("XH", "2,3").split(",")]
    for k, h in enumerate(XH):
        hk[h] = xpart(XP[k + 1], XP[k + 2], k == len(XH) - 1)
    ssm_unit(a, T0 + 4, hk)
    a(f"""
    s_cmp_lt_u32 s{S_WAVE}, 6
    s_cbranch_scc1 L_st_npx
    s_cmp_eq_u32 s{S_WAVE}, 7
    s_cselect_b32 s{T0 + 4}, s{S_ODD}, 0
    s_cmp_eq_u32 s{T0 + 4}, 1
    s_cbranch_scc1 L_st_npx
    s_lshr_b32 s{T0 + 4}, s{S_SLOT}, 1
    s_mul_i32 s{T0 + 4}, s{T0 + 4}, 3
    s_add_u32 s{T0 + 4}, s{T0 + 4}, s{T0 + 10}
    s_mul_i32 s{T0 + 4}, s{T0 + 4}, 3072
    s_add_u32 s{T0 + 4}, s{T0 + 4}, {PX - 6 * 3072}
    v_lshl_add_u32 v2, v1, 4, s{T0 + 4}
    global_store_dwordx4 v2, v[84:87], {sp(P_WS)} sc1
    global_store_dwordx4 v2, v[88:91], {sp(P_WS)} offset:1024 sc1
    global_store_dwordx4 v2, v[92:95], {sp(P_WS)} offset:2048 sc1
    """)
    a.label("L_st_npx")
    a(f"""
    s_cmp_eq_u32 s{T0}, 0
    s_cbranch_scc1 L_st_nwo
    s_waitcnt vmcnt(0)
    """)
    for e in range(5):
        a(f"global_store_dwordx4 v{WC + 5}, {vq(160 + 4 * e)}, {sp(P_WS)} offset:{1024 * e - 1024} sc1")
    a.label("L_st_nwo")
    stamp(a, 2)
    a(f"s_mov_b32 s{T0 + 11}, s{T0}")
    pre_w()
    a(f"""
    s_waitcnt vmcnt(0)
    s_sub_u32 s{T0 + 4}, s{S_WAVE}, 4
    s_cmp_lt_u32 s{T0 + 4}, 2
    s_cbranch_scc0 L_st_n1
    s_lshl_b32 s{T0 + 4}, s{T0 + 4}, 10
    s_add_u32 s{T0 + 4}, s{T0 + 4}, {R_X}
    v_lshl_add_u32 v24, v1, 4, s{T0 + 4}
    v_min_u32 v24, {R_X + 1264}, v24
    ds_write_b128 v24, v[10:13]
    """)
    a.label("L_st_n1")
    a(f"""
    s_cmp_eq_u32 s{T0 + 11}, 0
    s_cbranch_scc1 L_st_n2
    s_lshl_b32 s{T0 + 4}, s2, 7
    s_add_u32 s{T0 + 4}, s{T0 + 4}, {FLAGS + ST_WO * FSTAGE}
    """)
    publish(a, T0 + 4, 24, 28)
    a.label("L_st_n2")
    a(f"""
    s_cmp_lt_u32 s{S_WAVE}, 6
    s_cbranch_scc1 L_st_w
    s_lshr_b32 s{T0 + 4}, s{S_SLOT}, 1
    s_lshl_b32 s{T0 + 4}, s{T0 + 4}, 2
    s_add_u32 s{T0 + 4}, s{T0 + 4}, s{T0 + 10}
    s_lshl_b32 s{T0 + 4}, s{T0 + 4}, 7
    s_add_u32 s{T0 + 4}, s{T0 + 4}, {FLAGS + ST_PX * FSTAGE - 6 * 128}
    s_cmp_eq_u32 s{S_WAVE}, 7
    s_cselect_b32 s{T0 + 5}, s{S_ODD}, 0
    s_cmp_eq_u32 s{T0 + 5}, 1
    s_cbranch_scc1 L_st_w
    """)
    publish(a, T0 + 4, 24, 28)
    a.label("L_st_w")
    a("s_waitcnt lgkmcnt(0)")
    a("s_barrier")
    stamp(a, 5)
    prepass()
    a(f"""
    s_cmp_eq_u32 s{S_WAVE}, 7
    s_cbranch_scc0 L_st_np
    v_min_u32 v24, 59, v1
    v_lshlrev_b32 v24, 7, v24
    v_add_u32 v24, {FLAGS + ST_W * FSTAGE}, v24
    v_add_u32 v25, {60 * 128}, v24
    v_add_u32 v26, {120 * 128}, v24
    v_add_u32 v27, {180 * 128}, v24
    """)
    poll(a, [24, 25, 26, 27], 28, sleep=int(os.environ.get('PSW', '0')))
    a(f"""
    v_mov_b32 v24, {L_CTR + 4}
    v_mov_b32 v25, 1
    ds_write_b32 v24, v25
    """)
    a.label("L_st_np")
    lds_spin(a, L_CTR + 4, 1, 24, 25)
    stamp(a, 3)
```

```python
EPOCH = 0x0
FLAGS = 0x1000
FSTAGE = 32768
ST_W, ST_O0, ST_U0, ST_X0, ST_O1, ST_U1, ST_X1, ST_WO, ST_PX = range(9)
STATS = 0x60000
STATS_L = 0x4000
CNT = 0x70000
WP = 0x100000
BUF = 0x280000
OB = 0x400000
X1T = 0x900000
WOP = 0xE00000
X2T = 0x1300000
PX = 0xF00000
DBG = 0x1900000
PROF = 0x2000000

TS8 = 100
T_NEAR = 0
T_G9 = 73
T_G7 = 84
T4_BASE = 8 * TS8 * 16
TS4 = 36
T_G5 = 0
T_G3 = 15
TAP_CH = T4_BASE + 4 * TS4 * 16

D_U = 0
D_U5 = 4608
D_U3 = D_U5 + 3104
D_U9 = D_U3 + 3104
D_U7 = D_U9 + 2080
DATA_CH = D_U7 + 2080


def conv_steps(j):
    st = []
    for p in range(8 if j == 0 else 16 if j == 1 else 17):
        st.append(("near", p, 8 * j - p))
    if j >= 4:
        st.append(("near", 17, 8 * j - 32))
    for e in (2, 3, 4):
        if j - e >= 0:
            st.append(("g5", e, j - e))
            st.append(("g3", e, j - e))
    if j >= 4:
        for sg in range(2):
            if sg == 0 or j >= 6:
                st.append(("g9", 16 * j - 32 * sg, sg))
                st.append(("g7", 16 * j - 32 * sg, sg))
    return st
```

```python
import os
from asmlib2 import Asm
from layout import *

PROFILE = bool(int(os.environ.get("PROFILE", "0")))
STOP = os.environ.get("STOP", "")

S_WAVE, S_HG, S_RB, S_SK, S_LAYER = 3, 4, 5, 6, 7
P_X, P_WQ, P_WO = 8, 10, 12
P_LA, P_AI, P_CR, P_CI, P_LD, P_DS, P_OUT, P_DBG, P_WS = 16, 18, 20, 22, 24, 26, 28, 30, 32
TAG = 34
S_ODD = 36
S_CH = 37
S_FOFF = 40
S_BOFF = 41
S_SLOT = 14
T0 = 42
EXS = 58
STP = 60
SPIN_LIMIT = 200000

R_T = 0
R_M = R_T + 3 * TAP_CH
R_X = 61440
L_CTR = R_M
L_ST = R_M + 64
L_CS = L_ST + 640
L_MAX = L_CS + 960
LDS_BYTES = 163840
QS = 496

LOG2E = 0x3fb8aa3b
INV2PI = 0x3e22f983
SCALE = 0x3e64f92e
WREG = 96


def sp(i):
    return f"s[{i}:{i + 1}]"


def vq(i, n=4):
    return f"v[{i}:{i + n - 1}]"


def add64(a, d, s, off):
    a(f"s_add_u32 s{d}, s{s}, {off}")
    a(f"s_addc_u32 s{d + 1}, s{s + 1}, 0")


CLK = "s_memrealtime" if os.environ.get("RT") else "s_memtime"


def stamp(a, i):
    if PROFILE:
        assert i < 36
        a(f"{CLK} s[{STP}:{STP + 1}]")
        a("s_waitcnt lgkmcnt(0)")
        a(f"s_mov_b32 s{62 + i}, s{STP}")


def stamp_l(a, i, stride):
    if PROFILE:
        a(f"{CLK} s[{STP}:{STP + 1}]")
        a("s_waitcnt lgkmcnt(0)")
        a(f"s_cmp_eq_u32 s{S_LAYER}, 0")
        a(f"s_cselect_b32 s{62 + i}, s{STP}, s{62 + i}")
        a(f"s_cselect_b32 s{62 + i + stride}, s{62 + i + stride}, s{STP}")


def stamp_init(a):
    if PROFILE:
        for i in range(36):
            a(f"s_mov_b32 s{62 + i}, 0")
        a("s_memrealtime s[98:99]")
        a("s_waitcnt lgkmcnt(0)")


def stamp_flush(a):
    if not PROFILE:
        return
    a(f"""
    s_mov_b64 exec, -1
    s_lshl_b32 s{T0}, s2, 3
    s_add_u32 s{T0}, s{T0}, s{S_WAVE}
    s_lshl_b32 s{T0}, s{T0}, 8
    s_add_u32 s{T0}, s{T0}, {PROF}
    """)
    add64(a, T0 + 2, P_WS, f"s{T0}")
    a(f"""
    v_mov_b32 v0, 0
    s_memrealtime s[{STP}:{STP + 1}]
    s_waitcnt lgkmcnt(0)
    v_mov_b32 v1, s100
    global_store_dword v0, v1, {sp(T0 + 2)} offset:244
    v_mov_b32 v1, s98
    global_store_dword v0, v1, {sp(T0 + 2)} offset:248
    v_mov_b32 v1, s{STP}
    global_store_dword v0, v1, {sp(T0 + 2)} offset:252
    """)
    for i in range(36):
        a(f"v_mov_b32 v1, s{62 + i}")
        a(f"global_store_dword v0, v1, {sp(T0 + 2)} offset:{4 * i}")


_uid = [0]


def uid(p):
    _uid[0] += 1
    return f"L_{p}{_uid[0]}"


def publish(a, off_expr_sgpr, va, vd):
    a(f"""
    v_lshl_add_u32 v{va}, v1, 4, s{off_expr_sgpr}
    v_mov_b32 v{vd}, s{TAG}
    v_mov_b32 v{vd + 1}, s{TAG + 1}
    v_mov_b32 v{vd + 2}, s{TAG}
    v_mov_b32 v{vd + 3}, s{TAG + 1}
    s_mov_b64 exec, 0xff
    global_store_dwordx4 v{va}, v[{vd}:{vd + 3}], {sp(P_WS)} sc1
    s_mov_b64 exec, -1
    """)


def get_tag(a, va, vd):
    L = uid("tag")
    a(f"""
    v_mov_b32 v{va}, 0
    s_mov_b32 s{T0 + 15}, 0
    """)
    a.label(L)
    a(f"""
    global_load_dwordx2 v[{vd}:{vd + 1}], v{va}, {sp(P_DBG)} sc1
    s_add_u32 s{T0 + 15}, s{T0 + 15}, 1
    s_waitcnt vmcnt(0)
    v_readfirstlane_b32 s{TAG}, v{vd}
    v_readfirstlane_b32 s{TAG + 1}, v{vd + 1}
    s_cmp_gt_u32 s{T0 + 15}, {SPIN_LIMIT}
    s_cbranch_scc1 L_end
    s_cmp_eq_u64 {sp(TAG)}, 0
    s_cbranch_scc1 {L}
    """)


def poll_issue(a, vaddrs, vd):
    for i, va in enumerate(vaddrs):
        a(f"global_load_dwordx2 v[{vd + 2 * i}:{vd + 2 * i + 1}], v{va}, {sp(P_WS)} sc1")


def poll(a, vaddrs, vd, issued=False, pre=0, sleep=0):
    L = uid("poll")
    a(f"s_mov_b32 s{T0 + 15}, 0")
    if issued:
        a(f"s_branch {L}_c")
    if pre != sleep:
        if pre:
            a(f"s_sleep {pre}")
        a(f"s_branch {L}_i")
    a.label(L)
    if sleep:
        a(f"s_sleep {sleep}")
    if pre != sleep:
        a.label(f"{L}_i")
    poll_issue(a, vaddrs, vd)
    if issued:
        a.label(f"{L}_c")
    a(f"s_add_u32 s{T0 + 15}, s{T0 + 15}, 1")
    a("s_waitcnt vmcnt(0)")
    for i in range(len(vaddrs)):
        if i == 0:
            a(f"v_cmp_ne_u64 vcc, {sp(TAG)}, v[{vd}:{vd + 1}]")
        else:
            a(f"v_cmp_ne_u64 {sp(T0 + 12)}, {sp(TAG)}, v[{vd + 2 * i}:{vd + 2 * i + 1}]")
            a(f"s_or_b64 vcc, vcc, {sp(T0 + 12)}")
    a(f"""
    s_cmp_gt_u32 s{T0 + 15}, {SPIN_LIMIT}
    s_cbranch_scc1 L_end
    s_cbranch_vccnz {L}
    """)


def lds_last(a, ctr_off, total, va, vd):
    a(f"""
    v_mov_b32 v{va}, {ctr_off}
    v_mov_b32 v{vd}, 1
    s_mov_b64 exec, 1
    ds_add_rtn_u32 v{vd}, v{va}, v{vd}
    s_waitcnt lgkmcnt(0)
    s_mov_b64 exec, -1
    v_readfirstlane_b32 s{T0 + 14}, v{vd}
    s_cmp_eq_u32 s{T0 + 14}, {total - 1}
    """)


def lds_spin(a, off, want, va, vd):
    L = uid("sp")
    a(f"""
    v_mov_b32 v{va}, {off}
    s_mov_b32 s{T0 + 15}, 0
    """)
    a.label(L)
    a(f"""
    ds_read_b32 v{vd}, v{va}
    s_add_u32 s{T0 + 15}, s{T0 + 15}, 1
    s_waitcnt lgkmcnt(0)
    v_readfirstlane_b32 s{T0 + 14}, v{vd}
    s_cmp_gt_u32 s{T0 + 15}, {SPIN_LIMIT * 10}
    s_cbranch_scc1 L_end
    s_cmp_lt_u32 s{T0 + 14}, {want}
    s_cbranch_scc1 {L}
    """)


def slab_offsets(a, dst, rowbytes):
    for e in range(5):
        a(f"""
        v_add_u32 v{dst + e}, {64 * e}, v1
        v_mul_u32_u24 v{dst + 5}, 205, v{dst + e}
        v_lshrrev_b32 v{dst + 5}, 11, v{dst + 5}
        v_mul_u32_u24 v{dst + 6}, 10, v{dst + 5}
        v_sub_u32 v{dst + e}, v{dst + e}, v{dst + 6}
        v_and_b32 v{dst + 6}, 3, v{dst + 5}
        v_bfe_u32 v{dst + 7}, v{dst + 5}, 2, 2
        v_lshl_or_b32 v{dst + 6}, v{dst + 7}, 3, v{dst + 6}
        v_lshrrev_b32 v{dst + 7}, 4, v{dst + 5}
        v_lshl_or_b32 v{dst + 6}, v{dst + 7}, 2, v{dst + 6}
        v_mul_u32_u24 v{dst + 6}, {rowbytes}, v{dst + 6}
        v_lshl_add_u32 v{dst + e}, v{dst + e}, 4, v{dst + 6}
        """)


class Sched:
    def __init__(self, a):
        self.a, self.q = a, []
        self.lds, self.vm = [], []

    def push(self, text, kind=None, tag=None):
        self.q.append((text, kind, tag))

    def emit1(self):
        text, kind, tag = self.q.pop(0)
        if callable(text):
            text()
        else:
            self.a(text)
        if kind == "lds":
            self.lds.append(tag)
        elif kind == "vm":
            self.vm.append(tag)

    def flush(self, n=None):
        while self.q and (n is None or n > 0):
            self.emit1()
            if n is not None:
                n -= 1

    def need(self, kind, tag):
        while any(k == kind and t == tag for _, k, t in self.q):
            self.emit1()
        l = self.lds if kind == "lds" else self.vm
        idx = max(i for i, t in enumerate(l) if t == tag)
        return len(l) - 1 - idx

    def mfma(self, text, per=1):
        self.a(text)
        self.flush(per)
```

```python
import os
from asmlib2 import Asm
from layout import *

PROFILE = bool(int(os.environ.get("PROFILE", "0")))
STOP = os.environ.get("STOP", "")

S_WAVE, S_HG, S_RB, S_SK, S_LAYER = 3, 4, 5, 6, 7
P_X, P_WQ, P_WO = 8, 10, 12
P_LA, P_AI, P_CR, P_CI, P_LD, P_DS, P_OUT, P_DBG, P_WS = 16, 18, 20, 22, 24, 26, 28, 30, 32
TAG = 34
S_ODD = 36
S_CH = 37
S_FOFF = 40
S_BOFF = 41
S_SLOT = 14
T0 = 42
EXS = 58
STP = 60
SPIN_LIMIT = 200000

R_T = 0
R_M = R_T + 3 * TAP_CH
R_X = 61440
L_CTR = R_M
L_ST = R_M + 64
L_CS = L_ST + 640
L_MAX = L_CS + 960
LDS_BYTES = 163840
QS = 496

LOG2E = 0x3fb8aa3b
INV2PI = 0x3e22f983
SCALE = 0x3e64f92e
WREG = 96


def sp(i):
    return f"s[{i}:{i + 1}]"


def vq(i, n=4):
    return f"v[{i}:{i + n - 1}]"


def add64(a, d, s, off):
    a(f"s_add_u32 s{d}, s{s}, {off}")
    a(f"s_addc_u32 s{d + 1}, s{s + 1}, 0")


CLK = "s_memrealtime" if os.environ.get("RT") else "s_memtime"


def stamp(a, i):
    if PROFILE:
        assert i < 36
        a(f"{CLK} s[{STP}:{STP + 1}]")
        a("s_waitcnt lgkmcnt(0)")
        a(f"s_mov_b32 s{62 + i}, s{STP}")


def stamp_l(a, i, stride):
    if PROFILE:
        a(f"{CLK} s[{STP}:{STP + 1}]")
        a("s_waitcnt lgkmcnt(0)")
        a(f"s_cmp_eq_u32 s{S_LAYER}, 0")
        a(f"s_cselect_b32 s{62 + i}, s{STP}, s{62 + i}")
        a(f"s_cselect_b32 s{62 + i + stride}, s{62 + i + stride}, s{STP}")


def stamp_init(a):
    if PROFILE:
        for i in range(36):
            a(f"s_mov_b32 s{62 + i}, 0")
        a("s_memrealtime s[98:99]")
        a("s_waitcnt lgkmcnt(0)")


def stamp_flush(a):
    if not PROFILE:
        return
    if os.environ.get("DBGT"):
        a(f"""
        s_mov_b64 exec, 1
        v_mov_b32 v0, 0
        s_memrealtime s[{STP}:{STP + 1}]
        s_waitcnt lgkmcnt(0)
        s_not_b32 s100, s100
        v_mov_b32 v1, s100
        global_atomic_umax v0, v1, {sp(P_DBG)}
        v_mov_b32 v1, s{STP}
        global_atomic_umax v0, v1, {sp(P_DBG)} offset:4
        """)
        for k, i in enumerate((0, 1, 5, 3, 6, 10, 14, 15, 19, 33, 20, 28, 34, 35)):
            a(f"v_mov_b32 v1, s{62 + i}")
            a(f"global_atomic_umax v0, v1, {sp(P_DBG)} offset:{8 + 4 * k}")
        return
    a(f"""
    s_mov_b64 exec, -1
    s_lshl_b32 s{T0}, s2, 3
    s_add_u32 s{T0}, s{T0}, s{S_WAVE}
    s_lshl_b32 s{T0}, s{T0}, 8
    s_add_u32 s{T0}, s{T0}, {PROF}
    """)
    add64(a, T0 + 2, P_WS, f"s{T0}")
    a(f"""
    v_mov_b32 v0, 0
    s_memrealtime s[{STP}:{STP + 1}]
    s_waitcnt lgkmcnt(0)
    v_mov_b32 v1, s100
    global_store_dword v0, v1, {sp(T0 + 2)} offset:244
    v_mov_b32 v1, s98
    global_store_dword v0, v1, {sp(T0 + 2)} offset:248
    v_mov_b32 v1, s{STP}
    global_store_dword v0, v1, {sp(T0 + 2)} offset:252
    """)
    for i in range(36):
        a(f"v_mov_b32 v1, s{62 + i}")
        a(f"global_store_dword v0, v1, {sp(T0 + 2)} offset:{4 * i}")


_uid = [0]


def uid(p):
    _uid[0] += 1
    return f"L_{p}{_uid[0]}"


def publish(a, off_expr_sgpr, va, vd):
    a(f"""
    v_lshl_add_u32 v{va}, v1, 4, s{off_expr_sgpr}
    v_mov_b32 v{vd}, s{TAG}
    v_mov_b32 v{vd + 1}, s{TAG + 1}
    v_mov_b32 v{vd + 2}, s{TAG}
    v_mov_b32 v{vd + 3}, s{TAG + 1}
    s_mov_b64 exec, 0xff
    global_store_dwordx4 v{va}, v[{vd}:{vd + 3}], {sp(P_WS)} sc1
    s_mov_b64 exec, -1
    """)


def get_tag(a, va, vd):
    L = uid("tag")
    a(f"""
    v_mov_b32 v{va}, 0
    s_mov_b32 s{T0 + 15}, 0
    """)
    a.label(L)
    a(f"""
    global_load_dwordx2 v[{vd}:{vd + 1}], v{va}, {sp(P_DBG)} sc1
    s_add_u32 s{T0 + 15}, s{T0 + 15}, 1
    s_waitcnt vmcnt(0)
    v_readfirstlane_b32 s{TAG}, v{vd}
    v_readfirstlane_b32 s{TAG + 1}, v{vd + 1}
    s_cmp_gt_u32 s{T0 + 15}, {SPIN_LIMIT}
    s_cbranch_scc1 L_end
    s_cmp_eq_u64 {sp(TAG)}, 0
    s_cbranch_scc1 {L}
    """)


def poll_issue(a, vaddrs, vd):
    for i, va in enumerate(vaddrs):
        a(f"global_load_dwordx2 v[{vd + 2 * i}:{vd + 2 * i + 1}], v{va}, {sp(P_WS)} sc1")


def poll(a, vaddrs, vd, issued=False, pre=0, sleep=0):
    L = uid("poll")
    a(f"s_mov_b32 s{T0 + 15}, 0")
    if issued:
        a(f"s_branch {L}_c")
    if pre != sleep:
        if pre:
            a(f"s_sleep {pre}")
        a(f"s_branch {L}_i")
    a.label(L)
    if sleep:
        a(f"s_sleep {sleep}")
    if pre != sleep:
        a.label(f"{L}_i")
    poll_issue(a, vaddrs, vd)
    if issued:
        a.label(f"{L}_c")
    a(f"s_add_u32 s{T0 + 15}, s{T0 + 15}, 1")
    a("s_waitcnt vmcnt(0)")
    for i in range(len(vaddrs)):
        if i == 0:
            a(f"v_cmp_ne_u64 vcc, {sp(TAG)}, v[{vd}:{vd + 1}]")
        else:
            a(f"v_cmp_ne_u64 {sp(T0 + 12)}, {sp(TAG)}, v[{vd + 2 * i}:{vd + 2 * i + 1}]")
            a(f"s_or_b64 vcc, vcc, {sp(T0 + 12)}")
    a(f"""
    s_cmp_gt_u32 s{T0 + 15}, {SPIN_LIMIT}
    s_cbranch_scc1 L_end
    s_cbranch_vccnz {L}
    """)


def lds_last(a, ctr_off, total, va, vd):
    a(f"""
    v_mov_b32 v{va}, {ctr_off}
    v_mov_b32 v{vd}, 1
    s_mov_b64 exec, 1
    ds_add_rtn_u32 v{vd}, v{va}, v{vd}
    s_waitcnt lgkmcnt(0)
    s_mov_b64 exec, -1
    v_readfirstlane_b32 s{T0 + 14}, v{vd}
    s_cmp_eq_u32 s{T0 + 14}, {total - 1}
    """)


def lds_spin(a, off, want, va, vd):
    L = uid("sp")
    a(f"""
    v_mov_b32 v{va}, {off}
    s_mov_b32 s{T0 + 15}, 0
    """)
    a.label(L)
    a(f"""
    ds_read_b32 v{vd}, v{va}
    s_add_u32 s{T0 + 15}, s{T0 + 15}, 1
    s_waitcnt lgkmcnt(0)
    v_readfirstlane_b32 s{T0 + 14}, v{vd}
    s_cmp_gt_u32 s{T0 + 15}, {SPIN_LIMIT * 10}
    s_cbranch_scc1 L_end
    s_cmp_lt_u32 s{T0 + 14}, {want}
    s_cbranch_scc1 {L}
    """)


def slab_offsets(a, dst, rowbytes):
    for e in range(5):
        a(f"""
        v_add_u32 v{dst + e}, {64 * e}, v1
        v_mul_u32_u24 v{dst + 5}, 205, v{dst + e}
        v_lshrrev_b32 v{dst + 5}, 11, v{dst + 5}
        v_mul_u32_u24 v{dst + 6}, 10, v{dst + 5}
        v_sub_u32 v{dst + e}, v{dst + e}, v{dst + 6}
        v_and_b32 v{dst + 6}, 3, v{dst + 5}
        v_bfe_u32 v{dst + 7}, v{dst + 5}, 2, 2
        v_lshl_or_b32 v{dst + 6}, v{dst + 7}, 3, v{dst + 6}
        v_lshrrev_b32 v{dst + 7}, 4, v{dst + 5}
        v_lshl_or_b32 v{dst + 6}, v{dst + 7}, 2, v{dst + 6}
        v_mul_u32_u24 v{dst + 6}, {rowbytes}, v{dst + 6}
        v_lshl_add_u32 v{dst + e}, v{dst + e}, 4, v{dst + 6}
        """)


class Sched:
    def __init__(self, a):
        self.a, self.q = a, []
        self.lds, self.vm = [], []

    def push(self, text, kind=None, tag=None):
        self.q.append((text, kind, tag))

    def emit1(self):
        text, kind, tag = self.q.pop(0)
        if callable(text):
            text()
        else:
            self.a(text)
        if kind == "lds":
            self.lds.append(tag)
        elif kind == "vm":
            self.vm.append(tag)

    def flush(self, n=None):
        while self.q and (n is None or n > 0):
            self.emit1()
            if n is not None:
                n -= 1

    def need(self, kind, tag):
        while any(k == kind and t == tag for _, k, t in self.q):
            self.emit1()
        l = self.lds if kind == "lds" else self.vm
        idx = max(i for i, t in enumerate(l) if t == tag)
        return len(l) - 1 - idx

    def mfma(self, text, per=1):
        self.a(text)
        self.flush(per)
```
